```python
import torch

def _softmax(x, axis=-1):
    return torch.softmax(x, dim=axis)
def _gelu(x):
    return torch.nn.functional.gelu(x, approximate="tanh")
def _silu(x):
    return torch.nn.functional.silu(x)
def _sigmoid(x):
    return torch.sigmoid(x)
def _layernorm(x, axis=-1, eps=1e-5):
    m = x.mean(dim=axis, keepdim=True)
    v = x.var(dim=axis, keepdim=True, unbiased=False)
    return (x - m) / torch.sqrt(v + eps)
def _scatter_add(tgt, idx, src, axis=0):
    return tgt.clone().index_add_(axis, idx, src)
def _segment_sum(src, seg, n):
    out = torch.zeros((n,) + src.shape[1:], dtype=src.dtype)
    return out.index_add_(0, seg, src)
def _pad(x, pw):
    flat = tuple(v for pair in reversed(pw) for v in pair)
    return torch.nn.functional.pad(x, flat)

kernel_name = 'concat_heads__mha_block_cached__mha_block_cached__near_ridge'

def setup_inputs():

    _w = (lambda a: (lambda t: t.to(torch.bfloat16) if t.is_floating_point() else t)(torch.as_tensor(a)))
    def _A_setup():
        B, Sq, D = 16, 192, 512
        H, Sk, Dh = 32, 512, 128
        return {
            "x": _w((lambda *s: torch.randn(*s, dtype=torch.bfloat16) * 0.8)(B, Sq, D)),
            "k_cache": _w((lambda *s: torch.randn(*s, dtype=torch.bfloat16) * 0.8)(B, H, Sk, Dh)),
            "v_cache": _w((lambda *s: torch.randn(*s, dtype=torch.bfloat16) * 0.05)(B, H, Sk, Dh)),
            "wq": _w((lambda *s: torch.randn(*s, dtype=torch.bfloat16) * 0.8)(D, H * Dh) * (D ** -0.5)),
            "wo": _w((lambda *s: torch.randn(*s, dtype=torch.bfloat16) * 0.05)(H * Dh, D) * ((H * Dh) ** -0.5)),
        }
    _A_in = _A_setup()

    def _B_setup():
        B, Sq, D = 16, 192, 512
        H, Sk, Dh = 32, 512, 128
        return {
            "x": _w((lambda *s: torch.randn(*s, dtype=torch.bfloat16) * 0.8)(B, Sq, D)),
            "k_cache": _w((lambda *s: torch.randn(*s, dtype=torch.bfloat16) * 0.8)(B, H, Sk, Dh)),
            "v_cache": _w((lambda *s: torch.randn(*s, dtype=torch.bfloat16) * 0.05)(B, H, Sk, Dh)),
            "wq": _w((lambda *s: torch.randn(*s, dtype=torch.bfloat16) * 0.8)(D, H * Dh) * (D ** -0.5)),
            "wo": _w((lambda *s: torch.randn(*s, dtype=torch.bfloat16) * 0.05)(H * Dh, D) * ((H * Dh) ** -0.5)),
        }
    _B_in = _B_setup()

    return {
        "A_x": _A_in["x"],
        "A_k_cache": _A_in["k_cache"],
        "A_v_cache": _A_in["v_cache"],
        "A_wq": _A_in["wq"],
        "A_wo": _A_in["wo"],
        "B_x": _B_in["x"],
        "B_k_cache": _B_in["k_cache"],
        "B_v_cache": _B_in["v_cache"],
        "B_wq": _B_in["wq"],
        "B_wo": _B_in["wo"],
    }

def reference(A_x, A_k_cache, A_v_cache, A_wq, A_wo, B_x, B_k_cache, B_v_cache, B_wq, B_wo):
    def _A_ref(x, k_cache, v_cache, wq, wo):
        B, Sq, D = x.shape
        H, Dh = 32, 128
        q = (lambda x, *d: x.permute(*d))((x @ wq).reshape(B, Sq, H, Dh), 0, 2, 1, 3)
        scores = torch.einsum("bhqd,bhkd->bhqk", q, k_cache) * (Dh ** -0.5)
        p = _softmax(scores, axis=-1)
        o = torch.einsum("bhqk,bhkd->bhqd", p, v_cache)
        return (lambda x, *d: x.permute(*d))(o, 0, 2, 1, 3).reshape(B, Sq, H * Dh) @ wo

    def _B_ref(x, k_cache, v_cache, wq, wo):
        B, Sq, D = x.shape
        H, Dh = 32, 128
        q = (lambda x, *d: x.permute(*d))((x @ wq).reshape(B, Sq, H, Dh), 0, 2, 1, 3)
        scores = torch.einsum("bhqd,bhkd->bhqk", q, k_cache) * (Dh ** -0.5)
        p = _softmax(scores, axis=-1)
        o = torch.einsum("bhqk,bhkd->bhqd", p, v_cache)
        return (lambda x, *d: x.permute(*d))(o, 0, 2, 1, 3).reshape(B, Sq, H * Dh) @ wo

    a = _A_ref(A_x, A_k_cache, A_v_cache, A_wq, A_wo)
    b = _B_ref(B_x, B_k_cache, B_v_cache, B_wq, B_wo)
    return torch.concatenate([a, b], axis=-1)
```

```python
import sys


class R:
    __slots__ = ("f", "lo", "n")

    def __init__(self, f, lo, n=1):
        self.f, self.lo, self.n = f, lo, n

    def __str__(self):
        if self.n == 1:
            return f"{self.f}{self.lo}"
        return f"{self.f}[{self.lo}:{self.lo + self.n - 1}]"

    def regs(self):
        return [(self.f, self.lo + i) for i in range(self.n)]

    def sub(self, off, n=1):
        assert off + n <= self.n, (self, off, n)
        return R(self.f, self.lo + off, n)

    def __getitem__(self, i):
        return self.sub(i, 1)


def v(n, c=1):
    return R("v", n, c)


def a(n, c=1):
    return R("a", n, c)


def s(n, c=1):
    return R("s", n, c)


def regs_of(x):
    if isinstance(x, R):
        return x.regs()
    if isinstance(x, str):
        if x in ("vcc", "scc", "m0", "exec"):
            return [("x", x)]
    return []


class Ins:
    __slots__ = ("text", "kind", "rd", "wr", "stage", "req_l", "req_v", "pre_l", "pre_v", "pre_nop",
                 "srcc", "note", "keep", "ab", "data")

    def __init__(self, text, kind, rd=(), wr=(), stage=None, srcc=(), ab=(), data=()):
        self.text, self.kind = text, kind
        self.rd = set(rd)
        self.wr = set(wr)
        self.stage = stage
        self.req_l = None
        self.req_v = None
        self.pre_l = None
        self.pre_v = None
        self.pre_nop = 0
        self.srcc = set(srcc)
        self.ab = set(ab)
        self.data = set(data)
        self.note = None
        self.keep = False

    def __repr__(self):
        return self.text


def _rs(*xs):
    out = []
    for x in xs:
        out += regs_of(x)
    return out


def mfma(D, A, B, C):
    c = str(C)
    crs = regs_of(C)
    return Ins(f"v_mfma_f32_16x16x32_bf16 {D}, {A}, {B}, {c}", "mfma",
               rd=_rs(A, B) + crs, wr=D.regs(), srcc=crs, ab=_rs(A, B))


def ds_b128(dst, addr, off=0):
    assert 0 <= off < 65536, off
    return Ins(f"ds_read_b128 {dst}, {addr} offset:{off}", "ds_read", rd=addr.regs(), wr=dst.regs())


def ds_b64(dst, addr, off=0):
    assert 0 <= off < 65536, off
    return Ins(f"ds_read_b64 {dst}, {addr} offset:{off}", "ds_read", rd=addr.regs(), wr=dst.regs())


def ds_b32(dst, addr, off=0):
    return Ins(f"ds_read_b32 {dst}, {addr} offset:{off}", "ds_read", rd=addr.regs(), wr=dst.regs())


def ds_tr(dst, addr, off=0):
    assert 0 <= off < 65536, off
    return Ins(f"ds_read_b64_tr_b16 {dst}, {addr} offset:{off}", "ds_read", rd=addr.regs(), wr=dst.regs())


def ds_w32(addr, src, off=0):
    return Ins(f"ds_write_b32 {addr}, {src} offset:{off}", "ds_write", rd=_rs(addr, src))


def ds_w128(addr, src, off=0):
    return Ins(f"ds_write_b128 {addr}, {src} offset:{off}", "ds_write", rd=_rs(addr, src))


def ds_w64(addr, src, off=0):
    return Ins(f"ds_write_b64 {addr}, {src} offset:{off}", "ds_write", rd=_rs(addr, src))


def _w(n):
    return {1: "dword", 2: "dwordx2", 3: "dwordx3", 4: "dwordx4"}[n]


def bload(dst, voff, srd, soff=0, off=0, flags=""):
    assert 0 <= off < 4096
    fl = (" " + flags) if flags else ""
    o = f" offset:{off}" if off else ""
    return Ins(f"buffer_load_{_w(dst.n)} {dst}, {voff}, {srd}, {soff} offen{o}{fl}", "vm_load",
               rd=_rs(voff, srd, soff), wr=dst.regs())


def bload_op(op, dst, voff, srd, soff=0, off=0, flags=""):
    fl = (" " + flags) if flags else ""
    o = f" offset:{off}" if off else ""
    return Ins(f"{op} {dst}, {voff}, {srd}, {soff} offen{o}{fl}", "vm_load",
               rd=_rs(voff, srd, soff), wr=dst.regs())


def bstore(src, voff, srd, soff=0, off=0, flags=""):
    assert 0 <= off < 4096
    fl = (" " + flags) if flags else ""
    o = f" offset:{off}" if off else ""
    return Ins(f"buffer_store_{_w(src.n)} {src}, {voff}, {srd}, {soff} offen{o}{fl}", "vm_store",
               rd=_rs(src, voff, srd, soff), data=src.regs())


def bstore_op(op, src, voff, srd, soff=0, off=0, flags=""):
    fl = (" " + flags) if flags else ""
    o = f" offset:{off}" if off else ""
    return Ins(f"{op} {src}, {voff}, {srd}, {soff} offen{o}{fl}", "vm_store",
               rd=_rs(src, voff, srd, soff), data=src.regs())


def dma(voff, srd, soff=0, off=0, nt=False, stage=0):
    assert 0 <= off < 4096
    fl = " nt" if nt else ""
    o = f" offset:{off}" if off else ""
    return Ins(f"buffer_load_dwordx4 {voff}, {srd}, {soff} offen{o}{fl} lds", "dma",
               rd=_rs(voff, srd, soff, "m0"), stage=stage)


TRANS = ("v_exp_f32", "v_rcp_f32", "v_log_f32", "v_rsq_f32", "v_sqrt_f32")


def vop(name, dst, *srcs, mods="", extra_rd=(), extra_wr=()):
    kind = "trans" if name in TRANS else "valu"
    if name.startswith("v_permlane"):
        kind = "perm"
    txt = f"{name} {dst}, " + ", ".join(str(x) for x in srcs) + (" " + mods if mods else "")
    rd = _rs(*srcs) + _rs(*extra_rd)
    wr = _rs(dst) + _rs(*extra_wr)
    if name in ("v_fmac_f32", "v_pk_fmac_f16"):
        rd += _rs(dst)
    if kind == "perm":
        rd += _rs(dst)
        wr += _rs(*srcs)
    if name in ("v_readfirstlane_b32", "v_readlane_b32"):
        kind = "rfl"
    if name.startswith("v_cndmask") and len(srcs) == 2:
        rd += [("x", "vcc")]
    return Ins(txt, kind, rd=rd, wr=wr)


def vcmp(name, dst, s0, s1):
    return Ins(f"{name} {dst}, {s0}, {s1}", "valu", rd=_rs(s0, s1), wr=_rs(dst))


_SCC_W = ("s_add_u32", "s_sub_u32", "s_addc_u32", "s_subb_u32", "s_and_b32", "s_or_b32", "s_xor_b32", "s_lshl_b32",
          "s_lshr_b32", "s_add_i32", "s_sub_i32", "s_and_b64", "s_or_b64", "s_bfe_u32", "s_min_u32", "s_max_u32",
          "s_andn2_b64", "s_addk_i32", "s_lshl_b64", "s_ashr_i32", "s_xor_b64")


def sop(name, dst, *srcs):
    txt = f"{name} {dst}" + ("".join(", " + str(x) for x in srcs))
    rd = _rs(*srcs)
    wr = _rs(dst)
    if name in _SCC_W:
        wr += [("x", "scc")]
    if name in ("s_cselect_b32", "s_cselect_b64", "s_addc_u32", "s_subb_u32"):
        rd += [("x", "scc")]
    if name in ("s_addk_i32", "s_mulk_i32"):
        rd += _rs(dst)
    return Ins(txt, "salu", rd=rd, wr=wr)


def scmp(name, x, y):
    return Ins(f"{name} {x}, {y}", "salu", rd=_rs(x, y), wr=[("x", "scc")])


def branch(name, label):
    return Ins(f"{name} {label}", "branch", rd=[("x", "scc")] if "scc" in name else [])


def label(name):
    return Ins(f"{name}:", "label")


def raw(text, kind="other", rd=(), wr=()):
    return Ins(text, kind, rd=_rs(*rd), wr=_rs(*wr))


def comment(t):
    return Ins("; " + t, "label")


def barrier():
    return Ins("s_barrier", "barrier")


def lslot():
    return Ins("<lslot>", "lslot")


def vslot():
    return Ins("<vslot>", "vslot")


def publish(rel=0):
    return Ins("<publish>", "publish", stage=rel)


def interval():
    return Ins("<interval>", "interval")


def wait_all():
    i = Ins("s_waitcnt vmcnt(0) lgkmcnt(0)", "wait_all")
    return i


def wait_vm0():
    return Ins("s_waitcnt vmcnt(0)", "wait_vm0")


def wait_lg0():
    return Ins("s_waitcnt lgkmcnt(0)", "wait_lg0")


def nop(n):
    return Ins(f"s_nop {n}", "nop")


VIRT = ("label", "publish", "interval")


def resolve_waits(trace, T0=0):
    nds = 0
    nvm = 0
    ds_done = 0
    vm_done = 0
    ds_dest = {}
    vm_dest = {}
    dma_list = []
    last_l = None
    last_v = None
    T = T0
    warn = []

    def need_ds(o, X):
        nonlocal ds_done
        if o < ds_done:
            return
        if last_l is not None and last_l[1] > o:
            n = last_l[1] - 1 - o
            sl = last_l[0]
            sl.req_l = n if sl.req_l is None else min(sl.req_l, n)
        else:
            n = nds - 1 - o
            X.pre_l = n if X.pre_l is None else min(X.pre_l, n)
        ds_done = max(ds_done, o + 1)

    def need_vm(o, X):
        nonlocal vm_done
        if o < vm_done:
            return
        if last_v is not None and last_v[1] > o:
            n = last_v[1] - 1 - o
            sl = last_v[0]
            sl.req_v = n if sl.req_v is None else min(sl.req_v, n)
        else:
            n = nvm - 1 - o
            X.pre_v = n if X.pre_v is None else min(X.pre_v, n)
        vm_done = max(vm_done, o + 1)

    for X in trace:
        k = X.kind
        if k == "interval":
            T += 1
            continue
        if k == "label":
            continue
        if k == "lslot":
            last_l = (X, nds)
            continue
        if k == "vslot":
            last_v = (X, nvm)
            continue
        if k in ("wait_all", "wait_lg0"):
            ds_done = nds
        if k in ("wait_all", "wait_vm0"):
            vm_done = nvm
        if k in ("wait_all", "wait_lg0", "wait_vm0"):
            continue
        if k == "publish":
            tgt = [o for (o, st) in dma_list if st <= T + X.stage and o >= vm_done]
            if tgt:
                assert last_v is not None and last_v[1] > max(tgt), "publish without preceding vslot"
                need_vm(max(tgt), X)
            dma_list = [(o, st) for (o, st) in dma_list if o >= vm_done]
            continue
        touched = X.rd | X.wr
        for r in touched:
            if r in ds_dest:
                need_ds(ds_dest[r], X)
            if r in vm_dest:
                need_vm(vm_dest[r], X)
        if k in ("ds_read", "ds_write"):
            for r in X.wr:
                ds_dest[r] = nds
            nds += 1
        elif k in ("vm_load", "dma", "vm_store"):
            if k == "vm_load":
                for r in X.wr:
                    vm_dest[r] = nvm
            if k == "dma" or (k == "vm_store" and X.stage is not None):
                dma_list.append((nvm, T + X.stage))
            nvm += 1
    return warn


def _wait_text(l, vv):
    parts = []
    if vv is not None:
        parts.append(f"vmcnt({min(vv, 63)})")
    if l is not None:
        parts.append(f"lgkmcnt({min(l, 15)})")
    return "s_waitcnt " + " ".join(parts)


def expand(ins):
    out = []
    if ins.kind == "lslot":
        if ins.req_l is not None and ins.req_l < 16:
            out.append(("wait", _wait_text(ins.req_l, None)))
        elif ins.req_l is not None:
            out.append(("wait", _wait_text(15, None)))
        return out
    if ins.kind == "vslot":
        if ins.req_v is not None:
            out.append(("wait", _wait_text(None, ins.req_v)))
        return out
    if ins.kind in ("publish", "interval"):
        return out
    if ins.pre_l is not None or ins.pre_v is not None:
        out.append(("wait", _wait_text(ins.pre_l, ins.pre_v)))
    if ins.pre_nop:
        n = ins.pre_nop
        while n > 0:
            c = min(n, 16)
            out.append(("nop", f"s_nop {c - 1}", c))
            n -= c
    out.append(("ins", ins.text))
    return out


VALUK = ("valu", "trans", "perm", "rfl")


def hazard_need(P, X):
    need = 0
    pk, xk = P.kind, X.kind
    if pk in VALUK:
        wv = {r for r in P.wr if r[0] in "va"}
        ws = {r for r in P.wr if r[0] == "s" or r == ("x", "vcc")}
        if xk == "mfma" and (wv & X.rd):
            need = max(need, 2)
        if pk == "trans" and xk in VALUK and (wv & X.rd):
            need = max(need, 1)
        if xk == "perm" and (wv & X.rd):
            need = max(need, 2)
        if xk == "rfl" and (wv & X.rd):
            need = max(need, 1)
        if ws:
            if xk in VALUK and (ws & X.rd):
                need = max(need, 2)
            if xk in ("vm_load", "vm_store", "dma") and (ws & X.rd):
                need = max(need, 5)
            if xk in ("salu", "branch") and (ws & X.rd):
                need = max(need, 4)
        if ("x", "exec") in P.wr and xk == "mfma":
            need = max(need, 4)
    if pk == "mfma":
        D = P.wr
        if xk in VALUK and (D & (X.rd | X.wr)):
            need = max(need, 8)
        if xk in ("ds_read", "ds_write", "vm_load", "vm_store", "dma") and (D & (X.rd | X.wr)):
            need = max(need, 8)
        if xk == "mfma":
            if D & X.ab:
                need = max(need, 8)
            if D & X.srcc and not (X.srcc == D):
                need = max(need, 6)
            if (D & X.wr) and not (X.srcc == D or D == X.wr):
                need = max(need, 6)
        if xk in VALUK and (P.srcc & X.wr):
            need = max(need, 3)
    if pk == "salu" and ("x", "m0") in P.wr and xk == "dma":
        need = max(need, 1)
    if pk == "salu" and ("x", "exec") in P.wr and xk == "mfma":
        need = max(need, 1)
    if pk == "vm_store" and len(P.data) >= 3:
        if xk in VALUK and (P.data & X.wr):
            need = max(need, 2)
        elif P.data & X.wr:
            need = max(need, 1)
    return need


def resolve_hazards(trace):
    for it in range(4):
        changed = False
        hist = []
        for X in trace:
            ex = expand(X)
            if not ex or X.kind == "label":
                continue
            pre = 0
            for e in ex[:-1]:
                pre += e[2] if e[0] == "nop" else 1
            if ex[-1][0] != "ins":
                hist.append((None, 1))
                continue
            d = pre
            for (P, st) in reversed(hist[-24:]):
                if d >= 12:
                    break
                if P is not None:
                    n = hazard_need(P, X)
                    if n > d:
                        X.pre_nop += n - d
                        changed = True
                        d = n
                d += st
            if pre:
                hist.append((None, pre if not changed else pre))
            st = 1
            if X.kind == "nop":
                st = int(X.text.split()[1]) + 1
            hist.append((X, st))
        if not changed:
            return
    raise RuntimeError("hazard resolution did not converge")


def emit(static):
    lines = []
    for X in static:
        if X.kind == "label":
            lines.append(X.text)
            continue
        for e in expand(X):
            lines.append("    " + e[1])
    return lines
```

```python
from fw import *


class Unit:
    def __init__(self, reads, mfmas, name=""):
        self.reads, self.mfmas, self.name = reads, mfmas, name


def cost(ins):
    if ins.kind == "trans":
        return 2
    if ins.kind in ("valu", "perm", "rfl"):
        return 1
    return 0


def schedule(tail, units, L, fillers, specials=(), opening=(), RL=9, tail_fill_start=0, flush_end=True,
             extra_reads=(), heavy=None, post=()):
    nun = len(units) - L
    spine = [m for u in tail for m in u.mfmas] + [m for u in units[:nun] for m in u.mfmas]
    n = len(spine)
    new_tail = units[nun:]
    ntail = sum(len(u.mfmas) for u in tail)
    rd_gap = {}
    pre = []
    pos = ntail
    if ntail == 0:
        pre = list(opening)
        opening = ()
    first_free = 1 if opening else 0
    nextg = first_free
    for u in units:
        g = max(pos - RL, nextg)
        if ntail == 0 and pos < RL:
            pre.extend(u.reads)
        else:
            for r in u.reads:
                g = max(g, nextg)
                assert g < n and g < pos, ("read does not fit", u.name, g, n, pos)
                rd_gap.setdefault(g, []).append(r)
                nextg = g + 1
                g += 1
        pos += len(u.mfmas)
    F = [f for f in fillers]
    nf = len(F)
    pred_m = [-1] * nf
    succ_m = [n] * nf
    pred_f = [[] for _ in range(nf)]
    for i, (ins, rp) in enumerate(F):
        for j, m in enumerate(spine):
            conflict = (m.wr & (ins.rd | ins.wr)) or (m.rd & ins.wr)
            if not conflict:
                continue
            if j < rp:
                pred_m[i] = max(pred_m[i], j)
            else:
                succ_m[i] = min(succ_m[i], j)
        for k in range(i):
            o = F[k][0]
            if (o.wr & (ins.rd | ins.wr)) or (o.rd & ins.wr):
                pred_f[i].append(k)
    for i in range(nf - 1, -1, -1):
        for k in pred_f[i]:
            succ_m[k] = min(succ_m[k], succ_m[i])
    raw_m = [-1] * nf
    for i, (ins, rp) in enumerate(F):
        for j in range(min(rp, n)):
            if spine[j].wr & (ins.rd | ins.wr):
                raw_m[i] = j
    total = sum(cost(f[0]) for f in F)
    done = [False] * nf
    emitted_gap = [None] * nf
    out = list(pre)
    if pre:
        out.append(lslot())
    sp = list(specials)
    cum = 0

    def ready(i, g):
        if done[i]:
            return False
        if pred_m[i] > g:
            return False
        if raw_m[i] >= 0 and g - raw_m[i] < 3:
            return False
        for k in pred_f[i]:
            if not done[k]:
                return False
            if F[k][0].kind == "trans" and emitted_gap[k] == g and (F[k][0].wr & F[i][0].rd):
                return False
        return True

    def emit_f(i, g):
        nonlocal cum
        out.append(F[i][0])
        done[i] = True
        emitted_gap[i] = g
        cum += cost(F[i][0])

    def flush_before(g):
        for i in range(nf):
            if not done[i] and succ_m[i] <= g:
                stack = [i]
                order = []
                seen = set()

                def visit(x):
                    if x in seen or done[x]:
                        return
                    seen.add(x)
                    for k in pred_f[x]:
                        visit(k)
                    order.append(x)
                visit(i)
                for x in order:
                    assert pred_m[x] < g, ("impossible filler order", F[x][0].text, pred_m[x], g)
                    emit_f(x, g - 1)

    def pick(g, allow_trans, allow_v):
        for i in range(nf):
            if done[i]:
                continue
            k = F[i][0].kind
            if k == "trans" and not allow_trans:
                continue
            if k != "trans" and not allow_v:
                continue
            if ready(i, g):
                return i
        return None

    for g in range(n):
        flush_before(g)
        out.append(spine[g])
        target = total * (g + 1) / max(n - tail_fill_start, 1) if heavy is None else heavy(g, n, total)
        if g == 0 and opening:
            out.extend(opening)
            continue
        if g in rd_gap:
            rds = rd_gap[g]
            out.append(rds[0])
            assert len(rds) == 1
            i = pick(g, False, True)
            if i is not None:
                emit_f(i, g)
            while cum + 0.5 < target - 1.5:
                i = pick(g, False, True)
                if i is None:
                    break
                emit_f(i, g)
            continue
        if sp and sp[0][0] <= g:
            out.extend(sp.pop(0)[1])
            continue
        out.append(lslot())
        i = pick(g, True, False)
        if i is not None:
            emit_f(i, g)
        else:
            for _ in range(2):
                i = pick(g, False, True)
                if i is not None:
                    emit_f(i, g)
        while cum + 0.5 < target - 1.5:
            i = pick(g, True, True)
            if i is None:
                break
            emit_f(i, g)
    for item in sp:
        out.extend(item[1])
    if flush_end:
        for i in range(nf):
            if not done[i]:
                stack = []

                def visit2(x):
                    if done[x]:
                        return
                    for k in pred_f[x]:
                        visit2(k)
                    emit_f(x, n)
                visit2(i)
    out.extend(post)
    return out, new_tail
```

```python
import sys, os
sys.path.insert(0, os.path.dirname(os.path.abspath(__file__)))
from fw import *
from sched import *

NAME = "concat_heads__mha_block_cached__mha_block_cached__near_ridge"
STOP = os.environ.get("STOP", "")
OUTF = sys.argv[1] if len(sys.argv) > 1 else f"cdna_kernels/{NAME}.s"

KSL = 8448
STG = 25120
NST = 6
VOFF = 8448
WOFF = 16896
LDS_BYTES = 163840

sX, sK, sV, sWq, sWo, sWS, sOut, sDbg = [s(8 + 4 * i, 4) for i in range(8)]
sW = s(40)
sJ = s(41)
sPair = s(42)
sKoff = s(43)
sVoff = s(44)
sWqoff = s(45)
sWqoff2 = s(46)
sMKV = s(47)
sMWq = s(74)
sStW = s(75)
sCnt = s(76)
sHead = s(77)
sXq1 = s(78)
sXq2 = s(79)
sDelta = s(80)
sRSt = s(81)
sC = s(82, 2)
sT0 = s(84)
sT1 = s(85)
sT2 = s(86)
sT3 = s(87)
sWaveKV = s(88)
sWaveWq = s(89)
sWave2K = s(96)
sDump = s(92, 4)

vTid = v(0)
vK = v(1)
vV = v(2)
vWq = v(3)
vKVd = v(4)
vWqd = v(5)
vX = v(6)
vL = [v(7), v(8), v(9)]
vRL = [v(10, 2), v(12, 2), v(14, 2)]
S = [v(16, 24), v(40, 24)]
P = [v(64, 12), v(76, 12)]
Qc = v(88, 48)
Oacc = v(136, 96)
vT = v(232, 16)
vLane = v(248)
vT2 = v(250, 6)

Qacc = a(0, 96)
O0 = a(96, 48)
O1 = a(144, 48)
XS = [a(192, 12), a(204, 12)]
FR = [a(216 + 4 * i, 4) for i in range(8)]


def St(b, kt, qt):
    return S[b].sub((kt * 3 + qt) * 4, 4)


def Pt(b, qt):
    return P[b].sub(qt * 4, 4)


def Qct(ks, qt):
    return Qc.sub((ks * 3 + qt) * 4, 4)


def tile(base, dt, qt):
    return base.sub((dt * 3 + qt) * 4, 4)


vWoE = v(1)
vWoO = v(2)
vWod = v(5)
vPst = v(3)
ACC = v(136, 48)
PK = v(184, 24)
sWoT = s(45)
sWoS = s(46)
sMWo = s(74)
sPrev = s(90)
sNext = s(91)
OSLOT = [O0, O1, Qacc.sub(0, 48), Qacc.sub(48, 48)]


class G:
    fr = 0


def nextfrag():
    f = FR[G.fr % 8]
    G.fr += 1
    return f


def unit_qp(dt, par, xs, first):
    f = nextfrag()
    off = par * STG + (dt >> 1) * 256 + (dt & 1) * 8
    reads = [ds_tr(f.sub(0, 2), vWq, off), ds_tr(f.sub(2, 2), vWq, off + 1024)]
    ms = []
    for qt in range(3):
        D = tile(Qacc, dt, qt)
        ms.append(mfma(D, f, XS[xs].sub(qt * 4, 4), 0 if first else D))
    return Unit(reads, ms, f"QP{dt}")


def unit_qk(kt, ks, par, sb):
    f = nextfrag()
    off = par * STG + kt * 4224 + ks * 256
    reads = [ds_b128(f, vK, off)]
    ms = []
    for qt in range(3):
        D = St(sb, kt, qt)
        ms.append(mfma(D, f, Qct(ks, qt), 0 if ks == 0 else D))
    return Unit(reads, ms, f"QK{kt}{ks}")


def unit_pv(dt, par, pb, first=False):
    f = nextfrag()
    off = par * STG + (dt >> 1) * 256 + (dt & 1) * 32
    reads = [ds_tr(f.sub(0, 2), vV, off), ds_tr(f.sub(2, 2), vV, off + 4224)]
    ms = []
    for qt in range(3):
        D = tile(Oacc, dt, qt)
        ms.append(mfma(D, f, Pt(pb, qt), 0 if first else D))
    return Unit(reads, ms, f"PV{dt}")


def softmax_ops(sb, pb, first=False):
    ops = []
    for kt in range(2):
        for qt in range(3):
            t = St(sb, kt, qt)
            for r in range(4):
                ops.append(vop("v_exp_f32", t[r], t[r]))
            for r in range(4):
                if first and kt == 0 and r == 0:
                    ops.append(vop("v_mov_b32", vL[qt], t[r]))
                else:
                    ops.append(vop("v_add_f32", vL[qt], t[r], vL[qt]))
            p = Pt(pb, qt)
            ops.append(vop("v_cvt_pk_bf16_f32", p[2 * kt], t[0], t[1]))
            ops.append(vop("v_cvt_pk_bf16_f32", p[2 * kt + 1], t[2], t[3]))
    return ops


def interleave_softmax(ops):
    tiles = [ops[i * 10:(i + 1) * 10] for i in range(6)]
    out = []
    out += tiles[0][:4]
    for i in range(6):
        nxt = tiles[i + 1][:4] if i + 1 < 6 else []
        rest = tiles[i][4:]
        k = 0
        for j in range(max(len(nxt), len(rest))):
            if j < len(nxt):
                out.append(nxt[j])
            if k < len(rest):
                out.append(rest[k]); k += 1
                if j >= len(nxt) - 1 or True:
                    pass
        while k < len(rest):
            out.append(rest[k]); k += 1
    return out


def qconv_ops():
    ops = []
    n = 0
    for ks in range(4):
        for qt in range(3):
            for h in range(2):
                src = tile(Qacc, 2 * ks + h, qt)
                t = vT.sub((n % 4) * 4, 4)
                n += 1
                for r in range(4):
                    ops.append(vop("v_accvgpr_read_b32", t[r], src[r]))
                ops.append(vop("v_pk_mul_f32", t.sub(0, 2), t.sub(0, 2), sC))
                ops.append(vop("v_pk_mul_f32", t.sub(2, 2), t.sub(2, 2), sC))
                d = Qct(ks, qt)
                ops.append(vop("v_cvt_pk_bf16_f32", d[2 * h], t[0], t[1]))
                ops.append(vop("v_cvt_pk_bf16_f32", d[2 * h + 1], t[2], t[3]))
    return ops


def m0_set(base, imm):
    if imm == 0:
        return sop("s_mov_b32", "m0", base)
    return sop("s_add_u32", "m0", base, imm)


def dma_k(stage_rel):
    return [[m0_set(sMKV, 0), dma(vKVd, sK, sKoff, 0, nt=True, stage=stage_rel)],
            [m0_set(sMKV, 32), dma(vKVd, sK, sKoff, 1024, nt=True, stage=stage_rel)]]


def dma_v(stage_rel):
    return [[m0_set(sMKV, VOFF), dma(vKVd, sV, sVoff, 0, nt=True, stage=stage_rel)],
            [m0_set(sMKV, VOFF + 32), dma(vKVd, sV, sVoff, 1024, nt=True, stage=stage_rel)]]


def dma_wq(stage_rel):
    return [[m0_set(sMWq, 0), dma(vWqd, sWq, sWqoff, 0, stage=stage_rel)],
            [m0_set(sMWq, 1024), dma(vWqd, sWq, sWqoff2, 0, stage=stage_rel)]]


def adv_write_stage():
    return [sop("s_add_u32", sStW, sStW, STG),
            scmp("s_cmp_ge_u32", sStW, NST * STG),
            sop("s_cselect_b32", sT0, NST * STG, 0),
            sop("s_sub_u32", sStW, sStW, sT0),
            sop("s_add_u32", sMKV, sStW, sWaveKV),
            sop("s_add_u32", sMWq, sStW, sWaveWq)]


def adv_wq():
    return [sop("s_add_u32", sWqoff, sWqoff, 32 * 8192), sop("s_add_u32", sWqoff2, sWqoff2, 32 * 8192)]


def x_loads(xs):
    return [bload(XS[xs].sub(0, 4), vX, sX, 0),
            bload(XS[xs].sub(4, 4), vX, sX, sXq1),
            bload(XS[xs].sub(8, 4), vX, sX, sXq2)]


def adv_read_pair():
    sal = [sop("s_add_u32", sRSt, sRSt, 2 * STG),
           scmp("s_cmp_ge_u32", sRSt, NST * STG),
           sop("s_cselect_b32", sT0, NST * STG, 0),
           sop("s_sub_u32", sRSt, sRSt, sT0),
           sop("s_sub_u32", sDelta, 2 * STG, sT0)]
    val = [vop("v_add_u32", vK, sDelta, vK), vop("v_add_u32", vV, sDelta, vV), vop("v_add_u32", vWq, sDelta, vWq)]
    return sal, val


blocks = {}
layout = []
trace = []


def add_block(name, ins):
    blocks[name] = ins
    layout.append(name)


def prologue():
    o = []
    e = o.append
    e(raw("s_cmp_lt_u32 s2, 0x100", "salu", wr=["scc"]))
    e(branch("s_cbranch_scc1", "L_start"))
    e(raw("s_endpgm"))
    e(label("L_start"))
    e(raw("s_load_dwordx16 s[48:63], s[0:1], 0", wr=[s(48, 16)]))
    e(raw("s_load_dwordx4 s[64:67], s[0:1], 64", wr=[s(64, 4)]))
    e(raw("s_load_dwordx4 s[68:71], s[0:1], 80", wr=[s(68, 4)]))
    e(raw("s_load_dwordx2 s[72:73], s[0:1], 96", wr=[s(72, 2)]))
    e(vop("v_lshrrev_b32", vT[0], 6, vTid))
    e(vop("v_and_b32", vLane, 63, vTid))
    e(vop("v_readfirstlane_b32", sW, vT[0]))
    e(sop("s_and_b32", sT0, s(2), 7))
    e(sop("s_lshr_b32", sT1, s(2), 3))
    e(sop("s_lshr_b32", sT2, sT0, 2))
    e(sop("s_bfe_u32", sT3, sT0, 0x10001))
    e(sop("s_lshl_b32", sT3, sT3, 3))
    e(sop("s_and_b32", sPair, sT1, 7))
    e(sop("s_add_u32", sT3, sT3, sPair))
    e(sop("s_and_b32", sJ, sT0, 1))
    e(sop("s_lshl_b32", sJ, sJ, 2))
    e(sop("s_lshr_b32", sT1, sT1, 3))
    e(sop("s_add_u32", sJ, sJ, sT1))
    e(sop("s_lshl_b32", sPair, sT2, 4))
    e(sop("s_add_u32", sPair, sPair, sT3))
    e(wait_lg0())
    e(scmp("s_cmp_eq_u32", sT2, 0))
    px, pk, pv_, pq, po = s(48, 2), s(50, 2), s(52, 2), s(54, 2), s(56, 2)
    e(sop("s_cselect_b64", px, s(48, 2), s(58, 2)))
    e(sop("s_cselect_b64", pk, s(50, 2), s(60, 2)))
    e(sop("s_cselect_b64", pv_, s(52, 2), s(62, 2)))
    e(sop("s_cselect_b64", pq, s(54, 2), s(64, 2)))
    e(sop("s_cselect_b64", po, s(56, 2), s(66, 2)))

    def srd(dst, ptr, offreg, size):
        e(sop("s_add_u32", dst[0], ptr[0], offreg))
        e(sop("s_addc_u32", dst[1], ptr[1], 0))
        if isinstance(size, int):
            e(sop("s_mov_b32", dst[2], size))
        else:
            e(sop("s_mov_b32", dst[2], size))
        e(sop("s_mov_b32", dst[3], 0x20000))

    t = s(58)
    t2 = s(59)
    e(sop("s_mul_i32", t, sT3, 196608)); srd(sX, px, t, 196608)
    e(sop("s_lshl_b32", t, sT3, 5)); e(sop("s_lshl_b32", t2, sJ, 2)); e(sop("s_add_u32", t, t, t2))
    e(sop("s_lshl_b32", t, t, 17))
    srd(sK, pk, t, 524288); srd(sV, pv_, t, 524288)
    e(sop("s_lshl_b32", t, sJ, 10)); e(sop("s_sub_u32", t2, 4194304, t)); srd(sWq, pq, t, t2)
    e(sop("s_lshl_b32", t, sJ, 19)); srd(sWo, po, t, 524288)
    e(sop("s_mul_i32", t, sT3, 393216)); e(sop("s_lshl_b32", t2, sT2, 10)); e(sop("s_add_u32", t, t, t2))
    e(sop("s_sub_u32", t2, 6291456, t)); srd(sOut, s(68, 2), t, t2)
    e(sop("s_mul_i32", t, sPair, 1572864)); srd(sWS, s(72, 2), t, 1572864)
    e(sop("s_mov_b32", t, 0)); srd(sDbg, s(70, 2), t, 256)
    e(sop("s_mov_b32", t, 64 << 20)); srd(sDump, s(72, 2), t, 64 << 20)

    i16, g, r4, c4 = vT[1], vT[2], vT[3], vT[4]
    t0, t1 = vT[5], vT[6]
    e(vop("v_and_b32", i16, 15, vLane))
    e(vop("v_lshrrev_b32", g, 4, vLane))
    e(vop("v_bfe_u32", r4, vLane, 2, 2))
    e(vop("v_and_b32", c4, 3, vLane))
    e(sop("s_movk_i32", sT0, 1056))
    e(vop("v_mul_lo_u32", vK, r4, sT0))
    e(vop("v_lshl_add_u32", vK, c4, 6, vK))
    e(vop("v_lshl_add_u32", vK, g, 4, vK))
    e(vop("v_mul_lo_u32", vV, g, sT0))
    e(vop("v_lshl_add_u32", vV, r4, 6, vV))
    e(vop("v_lshl_add_u32", vV, c4, 3, vV))
    e(vop("v_add_u32", vV, VOFF, vV))
    e(vop("v_lshlrev_b32", vWq, 11, g))
    e(vop("v_and_b32", t0, 1, g))
    e(vop("v_lshl_add_u32", vWq, t0, 3, vWq))
    e(vop("v_lshrrev_b32", t0, 1, g))
    e(vop("v_lshl_add_u32", vWq, t0, 4, vWq))
    e(vop("v_lshl_add_u32", vWq, r4, 6, vWq))
    e(vop("v_lshl_add_u32", vWq, c4, 4, vWq))
    e(vop("v_add_u32", vWq, WOFF, vWq))
    w = vT[0]
    e(vop("v_lshlrev_b32", vKVd, 11, w))
    e(vop("v_lshl_add_u32", vKVd, r4, 8, vKVd))
    e(vop("v_lshl_add_u32", vKVd, g, 6, vKVd))
    e(vop("v_lshl_add_u32", vKVd, c4, 4, vKVd))
    e(vop("v_lshlrev_b32", vWqd, 16, w))
    e(vop("v_lshl_add_u32", vWqd, r4, 13, vWqd))
    e(vop("v_lshl_add_u32", vWqd, g, 6, vWqd))
    e(vop("v_lshl_add_u32", vWqd, c4, 4, vWqd))
    e(vop("v_mul_u32_u24", vX, 48, w))
    e(vop("v_add_u32", vX, vX, i16))
    e(vop("v_lshlrev_b32", vX, 10, vX))
    e(vop("v_lshl_add_u32", vX, g, 4, vX))
    e(sop("s_mul_i32", sWaveKV, sW, 2 * 1056))
    e(sop("s_lshl_b32", sWaveWq, sW, 11))
    e(sop("s_and_b32", sT0, sW, 1)); e(sop("s_lshl_b32", sT0, sT0, 3)); e(sop("s_add_u32", sWaveWq, sWaveWq, sT0))
    e(sop("s_lshr_b32", sT0, sW, 1)); e(sop("s_lshl_b32", sT0, sT0, 4)); e(sop("s_add_u32", sWaveWq, sWaveWq, sT0))
    e(sop("s_add_u32", sWaveWq, sWaveWq, WOFF))
    e(sop("s_mov_b32", sXq1, 16384)); e(sop("s_mov_b32", sXq2, 32768))
    c = 0x3e0293ee
    import struct, math
    c = struct.unpack("<I", struct.pack("<f", math.log2(math.e) / math.sqrt(128.0)))[0]
    e(sop("s_mov_b32", sC[0], c)); e(sop("s_mov_b32", sC[1], c))
    e(sop("s_mov_b32", sStW, 0))
    e(sop("s_mov_b32", sMKV, sWaveKV)); e(sop("s_mov_b32", sMWq, sWaveWq))
    e(sop("s_mov_b32", sWqoff, 0)); e(sop("s_mov_b32", sWqoff2, 32768))
    e(sop("s_mov_b32", sKoff, 0)); e(sop("s_mov_b32", sVoff, 0))
    e(sop("s_mov_b32", sRSt, 0))
    return o


def dump(regs, base_idx=0):
    o = []
    o.append(sop("s_lshl_b32", sT0, s(2), 2))
    o.append(sop("s_add_u32", sT0, sT0, sW))
    o.append(sop("s_lshl_b32", sT0, sT0, 16))
    o.append(vop("v_lshlrev_b32", vT2[0], 2, vLane))
    o.append(nop(7)); o.append(nop(7))
    idx = base_idx
    for rr in regs:
        for k in range(rr.n):
            o.append(sop("s_add_u32", sT1, sT0, idx * 256))
            o.append(bstore(rr[k], vT2[0], sDump, sT1))
            idx += 1
    o.append(wait_all())
    return o


def finish():
    return [wait_all(), raw("s_endpgm")]


X0 = v(16, 192)


def unit_qp0(j, dt, slot_off, vbase):
    f = nextfrag()
    off = slot_off + (dt >> 1) * 256 + (dt & 1) * 8
    reads = [ds_tr(f.sub(0, 2), vbase, off), ds_tr(f.sub(2, 2), vbase, off + 1024)]
    ms = []
    for qt in range(3):
        D = tile(Qacc, dt, qt)
        ms.append(mfma(D, f, X0.sub((j * 3 + qt) * 4, 4), 0 if j == 0 else D))
    return Unit(reads, ms, f"QP0_{j}_{dt}")


def adv_kv(k=True, vv=True):
    o = []
    if k:
        o.append(sop("s_add_u32", sKoff, sKoff, 8192))
    if vv:
        o.append(sop("s_add_u32", sVoff, sVoff, 8192))
    return o


def adv_wq_wrap():
    return [sop("s_add_u32", sWqoff, sWqoff, 32 * 8192),
            scmp("s_cmp_ge_u32", sWqoff, 0x400000),
            sop("s_cselect_b32", sT0, 0x400000 - 256, 0),
            sop("s_sub_u32", sWqoff, sWqoff, sT0),
            sop("s_add_u32", sWqoff2, sWqoff, 32768)]


def OPEN():
    return [interval(), vslot(), publish(0), barrier()]


def put(name, code):
    add_block(name, code)
    trace.extend(code)


def q0_phase():
    vB = vT2[1]
    plan = {10: [0, 1, 2], 11: [3, 4, 5], 12: [6, 7, 8], 13: [9, 10, 11], 14: [12, 13], 15: [14, 15]}
    slots = {10: [0, VOFF, WOFF], 11: [0, VOFF, WOFF], 12: [0, VOFF, WOFF], 13: [0, VOFF, WOFF],
             14: [VOFF, WOFF], 15: [VOFF, WOFF]}
    init = []
    e = init.append
    e(sop("s_sub_u32", sT1, sWaveWq, WOFF))
    xj = 0
    for T in range(10, 16):
        for j, so in zip(plan[T], slots[T]):
            base = (T % 6) * STG + so
            e(sop("s_add_u32", "m0", sT1, base))
            e(sop("s_mov_b32", sT2, j * 262144))
            e(dma(vWqd, sWq, sT2, 0, stage=T - 9))
            e(sop("s_add_u32", "m0", sT1, base + 1024))
            e(sop("s_mov_b32", sT2, j * 262144 + 32768))
            e(dma(vWqd, sWq, sT2, 0, stage=T - 9))
            for qt in range(3):
                e(bload(X0.sub((j * 3 + qt) * 4, 4), vX, sX, [0, sXq1, sXq2][qt], off=j * 64))
    e(sop("s_add_u32", "m0", sWaveKV, 3 * STG)); e(dma(vKVd, sK, 0, 0, nt=True, stage=6))
    e(sop("s_add_u32", "m0", sWaveKV, 3 * STG + 32)); e(dma(vKVd, sK, 0, 1024, nt=True, stage=6))
    e(vop("v_subrev_u32", vB, WOFF, vWq))
    e(vop("v_add_u32", vB, 4 * STG, vB))
    e(sop("s_mov_b32", sStW, 4 * STG))
    e(sop("s_add_u32", sMKV, sStW, sWaveKV)); e(sop("s_add_u32", sMWq, sStW, sWaveWq))
    e(sop("s_mov_b32", sKoff, 8192)); e(sop("s_mov_b32", sVoff, 0))
    e(sop("s_mov_b32", sWqoff, 256)); e(sop("s_mov_b32", sWqoff2, 256 + 32768))
    put("q0_init", init)

    tail = []
    for T in range(10, 16):
        par = T & 1
        units = []
        for j, so in zip(plan[T], slots[T]):
            units += [unit_qp0(j, dt, par * STG + so, vB) for dt in range(8)]
        spec = []
        post = []
        if T >= 13:
            for grp in dma_k(3):
                spec.append((12, grp))
            if T >= 14:
                for grp in dma_v(3):
                    spec.append((12, grp))
            for grp in dma_wq(3):
                spec.append((12, grp))
            post += adv_kv(True, T >= 14) + adv_wq_wrap() + adv_write_stage()
        if par == 1 and T < 15:
            d = {11: (0 - 4) * STG, 13: 2 * STG}[T]
            post.append(vop("v_add_u32", vB, d & 0xffffffff, vB))
        L = 3 if T < 15 else 0
        code, tail = schedule(tail, units, L, [], spec, OPEN(), post=post)
        put(f"q0_{T}", code)
    G.tail = []


def conv_and_qk0(par, name, pre_units=()):
    order = [(kt, ks) for ks in range(4) for kt in range(2)]
    units = list(pre_units) + [unit_qk(kt, ks, par, 0) for (kt, ks) in order]
    npre = sum(len(u.mfmas) for u in pre_units)
    fill = [(op, npre) for op in qconv_ops()]
    code, tail = schedule([], units, 0, fill, [], [])
    put(name, code)


import copy


def clone_tail(tail):
    return [Unit([], [copy.copy(m) for m in u.mfmas], u.name) for u in tail]


def generic_units(par, i_par, qp=True, qk=True, pv=True, qp_first=False, pv_first=False, pv_early=False):
    sb_next = (i_par + 1) & 1
    pb_prev = (i_par + 1) & 1
    QP = (lambda d: unit_qp(d, par, i_par, qp_first))
    QK = (lambda n: unit_qk(n >> 2, n & 3, par, sb_next))
    PV = (lambda d: unit_pv(d, par, pb_prev, pv_first))
    q, k, p = "QP", "QK", "PV"
    if qp and qk and pv and not pv_early:
        seq = [(q, 0), (q, 1), (k, 0), (q, 2), (q, 3), (p, 0), (q, 4), (q, 5), (k, 1), (q, 6), (q, 7), (p, 1),
               (p, 2), (k, 2), (p, 3), (k, 3), (p, 4), (k, 4), (p, 5), (p, 6), (p, 7), (k, 5), (k, 6), (k, 7)]
    elif qp and qk and pv:
        seq = [(p, 0), (p, 1), (q, 0), (p, 2), (p, 3), (q, 1), (p, 4), (p, 5), (q, 2), (p, 6), (p, 7), (q, 3),
               (k, 0), (q, 4), (q, 5), (k, 1), (q, 6), (q, 7), (k, 2), (k, 3), (k, 4), (k, 5), (k, 6), (k, 7)]
    elif qk and pv and not pv_early:
        seq = [(p, 0), (k, 0), (p, 1), (k, 1), (p, 2), (k, 2), (p, 3), (k, 3), (p, 4), (k, 4), (p, 5), (p, 6),
               (p, 7), (k, 5), (k, 6), (k, 7)]
    elif qk and pv:
        seq = [(p, n) for n in range(8)] + [(k, n) for n in range(8)]
    elif qp and qk:
        seq = [(q, 0), (q, 1), (k, 0), (q, 2), (q, 3), (k, 1), (q, 4), (q, 5), (k, 2),
               (q, 6), (q, 7)] + [(k, n) for n in range(3, 8)]
    elif qp and pv:
        seq = [(q, 0), (q, 1), (p, 0), (q, 2), (q, 3), (p, 1), (q, 4), (q, 5), (p, 2),
               (q, 6), (q, 7)] + [(p, n) for n in range(3, 8)]
    elif pv:
        seq = [(p, n) for n in range(8)]
    elif qp:
        seq = [(q, n) for n in range(8)]
    fn = {"QP": QP, "QK": QK, "PV": PV}
    return [fn[kk](n) for (kk, n) in seq]


def step_specials(i_par, qp, x_gap, kv=True):
    sp = []
    if qp:
        xl = x_loads(i_par)
        sp.append((x_gap, xl + [vop("v_add_u32", vX, 64, vX)]))
    groups = []
    if kv:
        groups += dma_k(3) + dma_v(3)
    if qp:
        groups += dma_wq(3)
    book = []
    if kv:
        book += [adv_kv()]
    if qp:
        book += [adv_wq_wrap()]
    book += [adv_write_stage()]
    for gi, grp in enumerate(groups):
        sp.append((x_gap + 1, list(grp)))
    post = []
    for b in book:
        post += b
    return sp, post


def lreduce_ops():
    ops = []
    for qt in range(3):
        t = vT2[2 + qt]
        l = vL[qt]
        ops.append(vop("v_mov_b32", t, l))
        ops.append(vop("v_permlane16_swap_b32", l, t))
        ops.append(vop("v_add_f32", l, l, t))
        ops.append(vop("v_mov_b32", t, l))
        ops.append(vop("v_permlane32_swap_b32", l, t))
        ops.append(vop("v_add_f32", l, l, t))
        ops.append(vop("v_rcp_f32", vRL[qt][0], l))
    return ops


def oepi_ops(dst, shift):
    ops = []
    if shift:
        for k in range(48):
            ops.append(vop("v_accvgpr_mov_b32", O0[k], O1[k]))
    n = 0
    for ks in range(4):
        for h in range(2):
            for qt in range(3):
                src = tile(Oacc, 2 * ks + h, qt)
                t = vT.sub((n % 2) * 8, 4)
                u = vT.sub((n % 2) * 8 + 4, 2)
                n += 1
                ops.append(vop("v_pk_mul_f32", t.sub(0, 2), src.sub(0, 2), vRL[qt], mods="op_sel_hi:[1,0]"))
                ops.append(vop("v_pk_mul_f32", t.sub(2, 2), src.sub(2, 2), vRL[qt], mods="op_sel_hi:[1,0]"))
                ops.append(vop("v_cvt_pk_bf16_f32", u[0], t[0], t[1]))
                ops.append(vop("v_cvt_pk_bf16_f32", u[1], t[2], t[3]))
                d = dst.sub((ks * 3 + qt) * 4, 4)
                ops.append(vop("v_accvgpr_write_b32", d[2 * h], u[0]))
                ops.append(vop("v_accvgpr_write_b32", d[2 * h + 1], u[1]))
    return ops


def gen_step(tail, i_par, qp=True, qk=True, pv=True, qp_first=False, pv_first=False, sm_first=False,
             oepi=None, L=3, last_of_pair=False, pre_post=(), kv=True, extra_fill=(), wo=False):
    par = i_par
    pv_early = oepi is not None
    units = generic_units(par, i_par, qp, qk, pv, qp_first, pv_first, pv_early)
    ntail = sum(len(u.mfmas) for u in tail)
    sm = interleave_softmax(softmax_ops(i_par, i_par, sm_first))
    nsp = ntail + sum(len(u.mfmas) for u in units[:len(units) - L])
    fill = []
    if oepi is not None:
        dst, shift = oepi
        eo = oepi_ops(dst, shift)
        smf = [(op, ntail) for op in sm]
        eof = [(op, nsp) for op in eo]
        nshift = 48 if shift else 0
        merged = []
        a_, b_ = smf, eof
        ia = ib = 0
        while ia < len(a_) or ib < len(b_):
            if ia < len(a_):
                merged.append(a_[ia]); ia += 1
            for _ in range(3):
                if ib < len(b_):
                    merged.append(b_[ib]); ib += 1
        fill = merged
    else:
        fill = [(op, ntail) for op in sm]
    fill += list(extra_fill)
    xg = 0
    pos = ntail
    for u in units:
        pos += len(u.mfmas)
        if u.name.startswith("QP"):
            xg = pos
    if not qp:
        xg = 6
    if wo:
        sp = [(xg + 1, grp) for grp in dma_wo(3)]
        post = adv_wo() + adv_write_stage_wo()
    else:
        sp, post = step_specials(i_par, qp, xg, kv)
    post = list(pre_post) + post
    if last_of_pair:
        sal, val = adv_read_pair()
        post += sal + val
    code, nt = schedule(tail, units, L, fill, sp, OPEN(), post=post)
    return code, nt


def loop_ctl(lbl, count):
    return [sop("s_sub_u32", sCnt, sCnt, 1), scmp("s_cmp_lg_u32", sCnt, 0), branch("s_cbranch_scc1", lbl)]


def check_ops():
    return []


def block_C(tail, qp, name, final=False):
    pre14 = []
    code14, t = gen_step(tail, 0, qp=qp, qk=True, pv=True, wo=final)
    if final:
        code14 = wo_setup() + code14
    if qp:
        code14 = [vop("v_add_u32", vX, (-1024) & 0xffffffff, vX)] + code14
    par = 1
    if not final:
        unitsA = generic_units(par, 1, qp=True, qk=False, pv=False) if qp else []
    ntail = sum(len(u.mfmas) for u in t)
    sm = interleave_softmax(softmax_ops(1, 1))
    fill = [(op, ntail) for op in sm] + [(op, ntail) for op in lreduce_ops()]
    if final:
        unitsA = generic_units(par, 1, qp=False, qk=False, pv=True)
    xg = ntail + sum(len(u.mfmas) for u in unitsA)
    if final:
        sp = [(ntail + 2, grp) for grp in dma_wo(3)]
        post = adv_wo() + adv_write_stage_wo()
    else:
        sp, post = step_specials(1, qp, xg - 1, True)
    codeA, tA = schedule(t, unitsA, 0, fill, sp, OPEN(), post=post)
    codeA += check_ops()
    if final:
        return code14 + codeA, []
    pvu = generic_units(par, 1, qp=False, qk=False, pv=True)
    order = [(kt, ks) for ks in range(4) for kt in range(2)]
    qku = [unit_qk(kt, ks, par, 0) for (kt, ks) in order]
    units = pvu + qku
    fillB = [(op, 24) for op in qconv_ops()]
    sal, val = adv_read_pair()
    codeB, tB = schedule([], units, 3, fillB, [], [], post=sal + val)
    return code14 + codeA + codeB, tB


def attention():
    pre = x_loads(0) + [vop("v_add_u32", vX, 64, vX)] + x_loads(1) + [vop("v_add_u32", vX, 64, vX)]
    pre += [sop("s_mov_b32", sRSt, 2 * STG),
            vop("v_add_u32", vK, 2 * STG, vK), vop("v_add_u32", vV, 2 * STG, vV), vop("v_add_u32", vWq, 2 * STG, vWq),
            sop("s_mov_b32", sHead, 0)]
    put("x01", pre)
    order = [(kt, ks) for ks in range(4) for kt in range(2)]
    qku = [unit_qk(kt, ks, 1, 0) for (kt, ks) in order]
    sal, val = adv_read_pair()
    code, tail0 = schedule([], qku, 3, [(op, 0) for op in qconv_ops()], [], [], post=sal + val)
    put("conv0", code)
    if STOP == "q0":
        fl = [m for u in tail0 for m in u.mfmas]
        put("dump", [lslot()] + fl + dump([Qc, S[0]]) + finish())
        return
    fr0 = G.fr % 8
    c0, t = gen_step(clone_tail(tail0), 0, pv=False, qp_first=True, sm_first=True)
    c1, tA = gen_step(t, 1, pv_first=True, last_of_pair=True)
    A0 = c0 + c1 + [sop("s_mov_b32", sCnt, 6), branch("s_branch", "L_B")]
    assert G.fr % 8 == fr0
    c0, t = gen_step(clone_tail(tail0), 0, qp_first=True, sm_first=True, oepi=(O1, True))
    c1, tA2 = gen_step(t, 1, pv_first=True, last_of_pair=True)
    A12 = [label("L_A12")] + c0 + c1 + [sop("s_mov_b32", sCnt, 6)]
    c0, t = gen_step(clone_tail(tA), 0)
    c1, tB = gen_step(t, 1, last_of_pair=True)
    B = [label("L_B")] + c0 + c1 + loop_ctl("L_B", 6)
    C, tC = block_C(clone_tail(tA), True, "C")
    C += [sop("s_add_u32", sHead, sHead, 1), scmp("s_cmp_lt_u32", sHead, 3), branch("s_cbranch_scc1", "L_A12")]
    assert [m.text for u in tC for m in u.mfmas] == [m.text for u in tail0 for m in u.mfmas]
    c0, t = gen_step(clone_tail(tail0), 0, qp=False, sm_first=True, oepi=(Qacc.sub(0, 48), False))
    c1, tA3 = gen_step(t, 1, qp=False, pv_first=True, last_of_pair=True)
    A3 = c0 + c1 + [sop("s_mov_b32", sCnt, 6)]
    c0, t = gen_step(clone_tail(tA3), 0, qp=False)
    c1, tB3 = gen_step(t, 1, qp=False, last_of_pair=True)
    B3 = [label("L_B3")] + c0 + c1 + loop_ctl("L_B3", 6)
    C3, _ = block_C(clone_tail(tA3), False, "C3", final=True)
    units = generic_units(0, 0, qp=False, qk=False, pv=True)
    sal, val = adv_read_pair()
    fillE = [(op, 24) for op in oepi_ops(Qacc.sub(48, 48), False)]
    E, _ = schedule([], units, 0, fillE, [(2, grp) for grp in dma_wo(3)], OPEN(),
                    post=adv_wo() + adv_write_stage_wo())
    C3 = C3 + sal + val + E
    for nm, b in (("A0", A0), ("A12", A12), ("B", B), ("C", C), ("A3", A3), ("B3", B3), ("C3", C3)):
        add_block(nm, b)
    tr = A0 + B * 6 + C + (A12 + B * 6 + C) * 2 + A3 + B3 * 6 + C3
    trace.extend(tr)
    if STOP == "att":
        put("dump", dump([O0, O1, Qacc]) + finish())


def unit_wo(tl, ks2, nt, par, q):
    f = nextfrag()
    t8 = 2 * q + tl
    ks = 2 * t8 + ks2
    base = vWoE if (nt & 1) == 0 else vWoO
    off = par * STG + tl * VOFF + ks2 * 4096 + (nt >> 1) * 512
    reads = [ds_tr(f.sub(0, 2), base, off), ds_tr(f.sub(2, 2), base, off + 2048)]
    ms = []
    for qt in range(3):
        D = ACC.sub((nt * 3 + qt) * 4, 4)
        B = OSLOT[ks >> 2].sub(((ks & 3) * 3 + qt) * 4, 4)
        ms.append(mfma(D, f, B, 0 if ks == 0 else D))
    return Unit(reads, ms, f"WO{t8}_{ks2}_{nt}")


def dma_wo(stage_rel):
    o = []
    o.append([m0_set(sMWo, 0), sop("s_add_u32", sT1, sWoT, sWoS), dma(vWod, sWo, sT1, 0, stage=stage_rel)])
    o.append([m0_set(sMWo, 1024), sop("s_add_u32", sT2, sT1, 8192), dma(vWod, sWo, sT2, 0, stage=stage_rel)])
    o.append([m0_set(sMWo, VOFF), sop("s_add_u32", sT2, sT1, 65536), dma(vWod, sWo, sT2, 0, stage=stage_rel)])
    o.append([m0_set(sMWo, VOFF + 1024), sop("s_add_u32", sT2, sT1, 65536 + 8192),
              dma(vWod, sWo, sT2, 0, stage=stage_rel)])
    return o


def adv_wo():
    return [sop("s_add_u32", sWoT, sWoT, 131072),
            scmp("s_cmp_ge_u32", sWoT, 524288),
            sop("s_cselect_b32", sWoT, 0, sWoT),
            sop("s_cselect_b32", sT0, 128, 0),
            sop("s_add_u32", sWoS, sWoS, sT0),
            sop("s_and_b32", sWoS, sWoS, 1023)]


def adv_write_stage_wo():
    return [sop("s_add_u32", sStW, sStW, STG),
            scmp("s_cmp_ge_u32", sStW, NST * STG),
            sop("s_cselect_b32", sT0, NST * STG, 0),
            sop("s_sub_u32", sStW, sStW, sT0),
            sop("s_add_u32", sMWo, sStW, sWave2K)]


def adv_read_pair_wo():
    sal = [sop("s_add_u32", sRSt, sRSt, 2 * STG),
           scmp("s_cmp_ge_u32", sRSt, NST * STG),
           sop("s_cselect_b32", sT0, NST * STG, 0),
           sop("s_sub_u32", sRSt, sRSt, sT0),
           sop("s_sub_u32", sDelta, 2 * STG, sT0)]
    val = [vop("v_add_u32", vWoE, sDelta, vWoE), vop("v_add_u32", vWoO, sDelta, vWoO)]
    return sal + val


def wo_setup():
    o = []
    e = o.append
    t0, t1, t2 = vT2[2], vT2[3], vT2[4]
    e(vop("v_bfe_u32", t0, vLane, 2, 3))
    e(vop("v_lshrrev_b32", t1, 6, vTid))
    e(vop("v_lshl_add_u32", t1, t1, 4, t0))
    e(vop("v_lshlrev_b32", vWod, 10, t1))
    e(vop("v_lshrrev_b32", t1, 5, vLane))
    e(vop("v_lshl_add_u32", vWod, t1, 6, vWod))
    e(vop("v_lshrrev_b32", t0, 2, t0))
    e(vop("v_lshlrev_b32", t0, 1, t0))
    e(vop("v_and_b32", t1, 3, vLane))
    e(vop("v_xor_b32", t1, t1, t0))
    e(vop("v_lshl_add_u32", vWod, t1, 4, vWod))
    e(sop("s_lshl_b32", sWave2K, sW, 11))
    e(sop("s_add_u32", sMWo, sStW, sWave2K))
    e(sop("s_mov_b32", sWoT, 0))
    e(sop("s_add_u32", sWoS, sJ, 1)); e(sop("s_and_b32", sWoS, sWoS, 7)); e(sop("s_lshl_b32", sWoS, sWoS, 7))
    return o


def wo_read_setup():
    o = []
    e = o.append
    t0, t1, t2 = vT2[2], vT2[3], vT2[4]
    e(vop("v_lshrrev_b32", t0, 5, vLane))
    e(vop("v_lshlrev_b32", t0, 10, t0))
    e(vop("v_bfe_u32", t1, vLane, 2, 3))
    e(vop("v_lshl_add_u32", t0, t1, 6, t0))
    e(vop("v_and_b32", t1, 3, vLane))
    e(vop("v_lshl_add_u32", t0, t1, 3, t0))
    e(vop("v_add_u32", t0, sRSt, t0))
    e(vop("v_bfe_u32", t1, vLane, 4, 1))
    e(vop("v_lshl_add_u32", vWoE, t1, 5, t0))
    e(vop("v_xor_b32", t1, 1, t1))
    e(vop("v_lshl_add_u32", vWoO, t1, 5, t0))
    e(vop("v_lshrrev_b32", t0, 6, vTid))
    e(vop("v_mul_u32_u24", t0, 6144, t0))
    e(vop("v_lshl_add_u32", vPst, vLane, 4, t0))
    e(sop("s_lshl_b32", sT0, sJ, 3)); e(sop("s_add_u32", sT0, sT0, sJ)); e(sop("s_mul_i32", sPrev, sT0, 24576))
    e(sop("s_mov_b32", sNext, sJ))
    return o


def pack_ops():
    ops = []
    for nt in range(4):
        for qt in range(3):
            src = ACC.sub((nt * 3 + qt) * 4, 4)
            d = PK.sub(((nt >> 1) * 3 + qt) * 4, 4)
            ops.append(vop("v_cvt_pk_bf16_f32", d[2 * (nt & 1)], src[0], src[1]))
            ops.append(vop("v_cvt_pk_bf16_f32", d[2 * (nt & 1) + 1], src[2], src[3]))
    return ops


def wo_units(q, par):
    return [unit_wo(tl, ks2, nt, par, q) for tl in range(2) for ks2 in range(2) for nt in range(4)]


def outproj():
    fr0 = G.fr
    dummy = wo_units(3, 0)[-3:]
    G.fr = fr0
    tail = clone_tail(dummy)
    body = [label("L_WO")]
    for q in range(4):
        par = (1, 0, 1, 0)[q]
        units = wo_units(q, par)
        ntail = sum(len(u.mfmas) for u in tail)
        fill = []
        sp = []
        opening = OPEN()
        post = []
        if q == 0:
            fill = [(op, ntail) for op in pack_ops()]
            sts = []
            for k in range(6):
                st = bstore(PK.sub(k * 4, 4), vPst, sWS, sPrev, off=k * 1024 if k < 4 else (k - 4) * 1024,
                            flags="sc1") if k < 4 else None
                if st is None:
                    st = bstore(PK.sub(k * 4, 4), vPst, sWS, sT3, off=(k - 4) * 1024, flags="sc1")
                st.stage = 2
                sts.append(st)
            sp.append((23, [sts[0], sts[1], sop("s_add_u32", sT3, sPrev, 4096)]))
            sp.append((23, [sts[2], sts[3]]))
            sp.append((23, [sts[4], sts[5]]))
        for grp in dma_wo(3):
            sp.append((2 if q else 30, grp))
        post += adv_wo() + adv_write_stage_wo()
        if par == 1:
            post += adv_read_pair_wo()
        if q == 2:
            pass
        if q == 3:
            post += [sop("s_add_u32", sNext, sNext, 1), sop("s_and_b32", sNext, sNext, 7),
                     sop("s_lshl_b32", sT0, sNext, 3), sop("s_add_u32", sT0, sT0, sJ),
                     sop("s_mul_i32", sPrev, sT0, 24576)]
        code, tail = schedule(tail, units, 3, fill, sp, opening, post=post)
        body += code
    body += loop_ctl("L_WO", 8)
    pre = wo_read_setup() + [sop("s_mov_b32", sCnt, 8)]
    put("wo_pre", pre)
    add_block("WO", body)
    trace.extend(body * 8)
    fin = [lslot()] + [m for u in clone_tail(tail) for m in u.mfmas]
    fin += [wait_vm0(), barrier()]
    one, zero = vT2[2], vT2[3]
    fin += [vop("v_mov_b32", one, 1),
            sop("s_lshl_b32", sT0, sPair, 3), sop("s_add_u32", sT0, sT0, sJ),
            vop("v_mov_b32", zero, sT0),
            scmp("s_cmp_lg_u32", sW, 0), branch("s_cbranch_scc1", "L_noflag"),
            raw("s_mov_b64 exec, 1", "salu", wr=["exec"]),
            bstore_op("buffer_store_byte", one, zero, sDbg, 0, flags="sc1"),
            raw("s_mov_b64 exec, -1", "salu", wr=["exec"]),
            label("L_noflag")]
    fin += [sop("s_lshl_b32", sT0, sPair, 3), vop("v_mov_b32", zero, sT0),
            sop("s_mov_b32", sCnt, 0x400000),
            label("L_poll"),
            bload(v(254, 2), zero, sDbg, 0, flags="sc1"),
            wait_vm0(),
            vop("v_and_b32", v(254), v(254), v(255)),
            vop("v_readfirstlane_b32", sT1, v(254)),
            scmp("s_cmp_eq_u32", sT1, 0x01010101), branch("s_cbranch_scc1", "L_polled"),
            raw("s_sleep 2"),
            sop("s_sub_u32", sCnt, sCnt, 1), scmp("s_cmp_lg_u32", sCnt, 0), branch("s_cbranch_scc1", "L_poll"),
            label("L_polled")]
    PL = [v(16, 120), v(184, 48)]
    regs = [v(16 + 4 * i, 4) for i in range(30)] + [v(184 + 4 * i, 4) for i in range(12)]
    n = 0
    for k in range(1, 8):
        fin += [sop("s_add_u32", sT0, sJ, k), sop("s_and_b32", sT0, sT0, 7),
                sop("s_lshl_b32", sT1, sJ, 3), sop("s_add_u32", sT0, sT0, sT1),
                sop("s_mul_i32", sT0, sT0, 24576), sop("s_add_u32", sT3, sT0, 4096)]
        for f in range(6):
            if f < 4:
                fin.append(bload(regs[n], vPst, sWS, sT0, off=f * 1024, flags="sc1"))
            else:
                fin.append(bload(regs[n], vPst, sWS, sT3, off=(f - 4) * 1024, flags="sc1"))
            n += 1
    SEL = vT.sub(0, 6)
    t0, t1 = vT[8], vT[9]
    fin += [vop("v_mov_b32", SEL[0], 0), vop("v_mov_b32", SEL[1], 0), vop("v_mov_b32", SEL[4], 0),
            vop("v_mov_b32", SEL[5], 0),
            vop("v_lshrrev_b32", t0, 4, vLane), vop("v_bfe_u32", t1, vLane, 2, 2),
            vcmp("v_cmp_eq_u32", "vcc", t0, t1),
            vop("v_and_b32", t0, 1, vLane), vop("v_lshlrev_b32", t0, 4, t0),
            vop("v_mov_b32", t1, 0x3f80), vop("v_lshlrev_b32", t0, t0, t1),
            vop("v_cndmask_b32", t0, 0, t0),
            vop("v_bfe_u32", t1, vLane, 1, 1),
            vcmp("v_cmp_eq_u32", "vcc", 0, t1),
            vop("v_cndmask_b32", SEL[2], 0, t0),
            vop("v_sub_u32", SEL[3], t0, SEL[2])]
    SelLo, SelHi = SEL.sub(2, 4), SEL.sub(0, 4)
    n = 0
    for k in range(7):
        for f in range(6):
            a_, qt = f // 3, f % 3
            fin.append(vslot())
            for h, sel in ((0, SelLo), (1, SelHi)):
                D = ACC.sub(((2 * a_ + h) * 3 + qt) * 4, 4)
                fin.append(mfma(D, sel, regs[n], D))
            n += 1
    vo = vT[10]
    fin += [vop("v_lshrrev_b32", t0, 6, vTid), vop("v_mul_u32_u24", t0, 48, t0), vop("v_and_b32", t1, 15, vLane),
            vop("v_add_u32", t0, t0, t1), vop("v_lshlrev_b32", vo, 11, t0),
            vop("v_lshrrev_b32", t0, 4, vLane), vop("v_lshl_add_u32", vo, t0, 3, vo),
            sop("s_lshl_b32", sT0, sJ, 7), sop("s_mov_b32", sT1, 16 * 2048), sop("s_mov_b32", sT2, 32 * 2048),
            sop("s_add_u32", sT1, sT1, sT0), sop("s_add_u32", sT2, sT2, sT0)]
    for nt in range(4):
        for qt in range(3):
            src = ACC.sub((nt * 3 + qt) * 4, 4)
            d = v(16 + (nt * 3 + qt) * 2, 2)
            fin.append(vop("v_cvt_pk_bf16_f32", d[0], src[0], src[1]))
            fin.append(vop("v_cvt_pk_bf16_f32", d[1], src[2], src[3]))
            fin.append(bstore(d, vo, sOut, [sT0, sT1, sT2][qt], off=nt * 32))
    put("final", fin)


def main():
    put("pro", prologue())
    q0_phase()
    attention()
    if STOP == "":
        outproj()
        put("fin", finish())
    resolve_waits(trace, T0=9)
    resolve_hazards(trace)
    static = []
    for nm in layout:
        static.append(comment(f"---- block {nm}"))
        static += blocks[nm]
    lines = emit(static)
    hdr = open(f"cdna_kernels/{NAME}.s.ref").read().split("; Override launch geometry")[0]
    out = [hdr.rstrip("\n"),
           f"; @launch grid=(256,1,1) block=(256,1,1) lds={LDS_BYTES}",
           '.amdgcn_target "amdgcn-amd-amdhsa--gfx950"', ".text", f".globl {NAME}_kernel", ".p2align 8",
           f".type {NAME}_kernel,@function", f"{NAME}_kernel:"]
    out += lines
    out += ['.section .rodata,"a"', ".p2align 6", f".amdhsa_kernel {NAME}_kernel",
            "  .amdhsa_next_free_vgpr 512", "  .amdhsa_next_free_sgpr 102", "  .amdhsa_accum_offset 256",
            "  .amdhsa_group_segment_fixed_size 0", "  .amdhsa_kernarg_size 104", "  .amdhsa_user_sgpr_count 2",
            "  .amdhsa_user_sgpr_kernarg_segment_ptr 1", "  .amdhsa_system_sgpr_workgroup_id_x 1",
            "  .amdhsa_float_denorm_mode_32 3", "  .amdhsa_float_denorm_mode_16_64 3",
            ".end_amdhsa_kernel"]
    open(OUTF, "w").write("\n".join(out) + "\n")
    nins = sum(1 for l in lines if l.startswith("    "))
    print(f"wrote {OUTF}: {nins} instructions", file=sys.stderr)


main()
```

```python
import sys


class R:
    __slots__ = ("f", "lo", "n")

    def __init__(self, f, lo, n=1):
        self.f, self.lo, self.n = f, lo, n

    def __str__(self):
        if self.n == 1:
            return f"{self.f}{self.lo}"
        return f"{self.f}[{self.lo}:{self.lo + self.n - 1}]"

    def regs(self):
        return [(self.f, self.lo + i) for i in range(self.n)]

    def sub(self, off, n=1):
        assert off + n <= self.n, (self, off, n)
        return R(self.f, self.lo + off, n)

    def __getitem__(self, i):
        return self.sub(i, 1)


def v(n, c=1):
    return R("v", n, c)


def a(n, c=1):
    return R("a", n, c)


def s(n, c=1):
    return R("s", n, c)


def regs_of(x):
    if isinstance(x, R):
        return x.regs()
    if isinstance(x, str):
        if x in ("vcc", "scc", "m0", "exec"):
            return [("x", x)]
    return []


class Ins:
    __slots__ = ("text", "kind", "rd", "wr", "stage", "req_l", "req_v", "pre_l", "pre_v", "pre_nop",
                 "srcc", "note", "keep", "ab", "data")

    def __init__(self, text, kind, rd=(), wr=(), stage=None, srcc=(), ab=(), data=()):
        self.text, self.kind = text, kind
        self.rd = set(rd)
        self.wr = set(wr)
        self.stage = stage
        self.req_l = None
        self.req_v = None
        self.pre_l = None
        self.pre_v = None
        self.pre_nop = 0
        self.srcc = set(srcc)
        self.ab = set(ab)
        self.data = set(data)
        self.note = None
        self.keep = False

    def __repr__(self):
        return self.text


def _rs(*xs):
    out = []
    for x in xs:
        out += regs_of(x)
    return out


def mfma(D, A, B, C):
    c = str(C)
    crs = regs_of(C)
    return Ins(f"v_mfma_f32_16x16x32_bf16 {D}, {A}, {B}, {c}", "mfma",
               rd=_rs(A, B) + crs, wr=D.regs(), srcc=crs, ab=_rs(A, B))


def ds_b128(dst, addr, off=0):
    assert 0 <= off < 65536, off
    return Ins(f"ds_read_b128 {dst}, {addr} offset:{off}", "ds_read", rd=addr.regs(), wr=dst.regs())


def ds_b64(dst, addr, off=0):
    assert 0 <= off < 65536, off
    return Ins(f"ds_read_b64 {dst}, {addr} offset:{off}", "ds_read", rd=addr.regs(), wr=dst.regs())


def ds_b32(dst, addr, off=0):
    return Ins(f"ds_read_b32 {dst}, {addr} offset:{off}", "ds_read", rd=addr.regs(), wr=dst.regs())


def ds_tr(dst, addr, off=0):
    assert 0 <= off < 65536, off
    return Ins(f"ds_read_b64_tr_b16 {dst}, {addr} offset:{off}", "ds_read", rd=addr.regs(), wr=dst.regs())


def ds_w32(addr, src, off=0):
    return Ins(f"ds_write_b32 {addr}, {src} offset:{off}", "ds_write", rd=_rs(addr, src))


def ds_w128(addr, src, off=0):
    return Ins(f"ds_write_b128 {addr}, {src} offset:{off}", "ds_write", rd=_rs(addr, src))


def ds_w64(addr, src, off=0):
    return Ins(f"ds_write_b64 {addr}, {src} offset:{off}", "ds_write", rd=_rs(addr, src))


def _w(n):
    return {1: "dword", 2: "dwordx2", 3: "dwordx3", 4: "dwordx4"}[n]


def bload(dst, voff, srd, soff=0, off=0, flags=""):
    assert 0 <= off < 4096
    fl = (" " + flags) if flags else ""
    o = f" offset:{off}" if off else ""
    return Ins(f"buffer_load_{_w(dst.n)} {dst}, {voff}, {srd}, {soff} offen{o}{fl}", "vm_load",
               rd=_rs(voff, srd, soff), wr=dst.regs())


def bload_op(op, dst, voff, srd, soff=0, off=0, flags=""):
    fl = (" " + flags) if flags else ""
    o = f" offset:{off}" if off else ""
    return Ins(f"{op} {dst}, {voff}, {srd}, {soff} offen{o}{fl}", "vm_load",
               rd=_rs(voff, srd, soff), wr=dst.regs())


def bstore(src, voff, srd, soff=0, off=0, flags=""):
    assert 0 <= off < 4096
    fl = (" " + flags) if flags else ""
    o = f" offset:{off}" if off else ""
    return Ins(f"buffer_store_{_w(src.n)} {src}, {voff}, {srd}, {soff} offen{o}{fl}", "vm_store",
               rd=_rs(src, voff, srd, soff), data=src.regs())


def bstore_op(op, src, voff, srd, soff=0, off=0, flags=""):
    fl = (" " + flags) if flags else ""
    o = f" offset:{off}" if off else ""
    return Ins(f"{op} {src}, {voff}, {srd}, {soff} offen{o}{fl}", "vm_store",
               rd=_rs(src, voff, srd, soff), data=src.regs())


def dma(voff, srd, soff=0, off=0, nt=False, stage=0, flags=""):
    assert 0 <= off < 4096
    fl = " nt" if nt else ""
    if flags:
        fl = " " + flags + fl
    o = f" offset:{off}" if off else ""
    return Ins(f"buffer_load_dwordx4 {voff}, {srd}, {soff} offen{o}{fl} lds", "dma",
               rd=_rs(voff, srd, soff, "m0"), stage=stage)


TRANS = ("v_exp_f32", "v_rcp_f32", "v_log_f32", "v_rsq_f32", "v_sqrt_f32")


def vop(name, dst, *srcs, mods="", extra_rd=(), extra_wr=()):
    kind = "trans" if name in TRANS else "valu"
    if name.startswith("v_permlane"):
        kind = "perm"
    txt = f"{name} {dst}, " + ", ".join(str(x) for x in srcs) + (" " + mods if mods else "")
    rd = _rs(*srcs) + _rs(*extra_rd)
    wr = _rs(dst) + _rs(*extra_wr)
    if name in ("v_fmac_f32", "v_pk_fmac_f16"):
        rd += _rs(dst)
    if kind == "perm":
        rd += _rs(dst)
        wr += _rs(*srcs)
    if name in ("v_readfirstlane_b32", "v_readlane_b32"):
        kind = "rfl"
    if name.startswith("v_cndmask") and len(srcs) == 2:
        rd += [("x", "vcc")]
    return Ins(txt, kind, rd=rd, wr=wr)


def vcmp(name, dst, s0, s1):
    return Ins(f"{name} {dst}, {s0}, {s1}", "valu", rd=_rs(s0, s1), wr=_rs(dst))


_SCC_W = ("s_add_u32", "s_sub_u32", "s_addc_u32", "s_subb_u32", "s_and_b32", "s_or_b32", "s_xor_b32", "s_lshl_b32",
          "s_lshr_b32", "s_add_i32", "s_sub_i32", "s_and_b64", "s_or_b64", "s_bfe_u32", "s_min_u32", "s_max_u32",
          "s_andn2_b64", "s_addk_i32", "s_lshl_b64", "s_ashr_i32", "s_xor_b64")


def sop(name, dst, *srcs):
    txt = f"{name} {dst}" + ("".join(", " + str(x) for x in srcs))
    rd = _rs(*srcs)
    wr = _rs(dst)
    if name in _SCC_W:
        wr += [("x", "scc")]
    if name in ("s_cselect_b32", "s_cselect_b64", "s_addc_u32", "s_subb_u32"):
        rd += [("x", "scc")]
    if name in ("s_addk_i32", "s_mulk_i32"):
        rd += _rs(dst)
    return Ins(txt, "salu", rd=rd, wr=wr)


def scmp(name, x, y):
    return Ins(f"{name} {x}, {y}", "salu", rd=_rs(x, y), wr=[("x", "scc")])


def branch(name, label):
    return Ins(f"{name} {label}", "branch", rd=[("x", "scc")] if "scc" in name else [])


def label(name):
    return Ins(f"{name}:", "label")


def raw(text, kind="other", rd=(), wr=()):
    return Ins(text, kind, rd=_rs(*rd), wr=_rs(*wr))


def comment(t):
    return Ins("; " + t, "label")


def barrier():
    return Ins("s_barrier", "barrier")


def lslot():
    return Ins("<lslot>", "lslot")


def vslot():
    return Ins("<vslot>", "vslot")


def publish(rel=0):
    return Ins("<publish>", "publish", stage=rel)


def interval():
    return Ins("<interval>", "interval")


def wait_all():
    i = Ins("s_waitcnt vmcnt(0) lgkmcnt(0)", "wait_all")
    return i


def wait_vm0():
    return Ins("s_waitcnt vmcnt(0)", "wait_vm0")


def wait_lg0():
    return Ins("s_waitcnt lgkmcnt(0)", "wait_lg0")


def nop(n):
    return Ins(f"s_nop {n}", "nop")


VIRT = ("label", "publish", "interval")


def resolve_waits(trace, T0=0):
    nds = 0
    nvm = 0
    ds_done = 0
    vm_done = 0
    ds_dest = {}
    vm_dest = {}
    dma_list = []
    last_l = None
    last_v = None
    T = T0
    warn = []

    def need_ds(o, X):
        nonlocal ds_done
        if o < ds_done:
            return
        if last_l is not None and last_l[1] > o:
            n = last_l[1] - 1 - o
            sl = last_l[0]
            sl.req_l = n if sl.req_l is None else min(sl.req_l, n)
        else:
            n = nds - 1 - o
            X.pre_l = n if X.pre_l is None else min(X.pre_l, n)
        ds_done = max(ds_done, o + 1)

    def need_vm(o, X):
        nonlocal vm_done
        if o < vm_done:
            return
        if last_v is not None and last_v[1] > o:
            n = last_v[1] - 1 - o
            sl = last_v[0]
            sl.req_v = n if sl.req_v is None else min(sl.req_v, n)
        else:
            n = nvm - 1 - o
            X.pre_v = n if X.pre_v is None else min(X.pre_v, n)
        vm_done = max(vm_done, o + 1)

    for X in trace:
        k = X.kind
        if k == "interval":
            T += 1
            continue
        if k == "label":
            continue
        if k == "lslot":
            last_l = (X, nds)
            continue
        if k == "vslot":
            last_v = (X, nvm)
            continue
        if k in ("wait_all", "wait_lg0"):
            ds_done = nds
        if k in ("wait_all", "wait_vm0"):
            vm_done = nvm
        if k in ("wait_all", "wait_lg0", "wait_vm0"):
            continue
        if k == "publish":
            tgt = [o for (o, st) in dma_list if st <= T + X.stage and o >= vm_done]
            if tgt:
                assert last_v is not None and last_v[1] > max(tgt), "publish without preceding vslot"
                need_vm(max(tgt), X)
            dma_list = [(o, st) for (o, st) in dma_list if o >= vm_done]
            continue
        touched = X.rd | X.wr
        for r in touched:
            if r in ds_dest:
                need_ds(ds_dest[r], X)
            if r in vm_dest:
                need_vm(vm_dest[r], X)
        if k in ("ds_read", "ds_write"):
            for r in X.wr:
                ds_dest[r] = nds
            nds += 1
        elif k in ("vm_load", "dma", "vm_store"):
            if X.note == "cond":
                continue
            if k == "vm_load":
                for r in X.wr:
                    vm_dest[r] = nvm
            if k == "dma" or (k == "vm_store" and X.stage is not None):
                dma_list.append((nvm, T + X.stage))
            nvm += 1
    return warn


def _wait_text(l, vv):
    parts = []
    if vv is not None:
        parts.append(f"vmcnt({min(vv, 63)})")
    if l is not None:
        parts.append(f"lgkmcnt({min(l, 15)})")
    return "s_waitcnt " + " ".join(parts)


def expand(ins):
    out = []
    if ins.kind == "lslot":
        if ins.req_l is not None and ins.req_l < 16:
            out.append(("wait", _wait_text(ins.req_l, None)))
        elif ins.req_l is not None:
            out.append(("wait", _wait_text(15, None)))
        return out
    if ins.kind == "vslot":
        if ins.req_v is not None:
            out.append(("wait", _wait_text(None, ins.req_v)))
        return out
    if ins.kind in ("publish", "interval"):
        return out
    if ins.pre_l is not None or ins.pre_v is not None:
        out.append(("wait", _wait_text(ins.pre_l, ins.pre_v)))
    if ins.pre_nop:
        n = ins.pre_nop
        while n > 0:
            c = min(n, 16)
            out.append(("nop", f"s_nop {c - 1}", c))
            n -= c
    out.append(("ins", ins.text))
    return out


VALUK = ("valu", "trans", "perm", "rfl")


def hazard_need(P, X):
    need = 0
    pk, xk = P.kind, X.kind
    if pk in VALUK:
        wv = {r for r in P.wr if r[0] in "va"}
        ws = {r for r in P.wr if r[0] == "s" or r == ("x", "vcc")}
        if xk == "mfma" and (wv & X.rd):
            need = max(need, 2)
        if pk == "trans" and xk in VALUK and (wv & X.rd):
            need = max(need, 1)
        if xk == "perm" and (wv & X.rd):
            need = max(need, 2)
        if xk == "rfl" and (wv & X.rd):
            need = max(need, 1)
        if ws:
            if xk in VALUK and (ws & X.rd):
                need = max(need, 2)
            if xk in ("vm_load", "vm_store", "dma") and (ws & X.rd):
                need = max(need, 5)
            if xk in ("salu", "branch") and (ws & X.rd):
                need = max(need, 4)
        if ("x", "exec") in P.wr and xk == "mfma":
            need = max(need, 4)
    if pk == "mfma":
        D = P.wr
        if xk in VALUK and (D & (X.rd | X.wr)):
            need = max(need, 8)
        if xk in ("ds_read", "ds_write", "vm_load", "vm_store", "dma") and (D & (X.rd | X.wr)):
            need = max(need, 8)
        if xk == "mfma":
            if D & X.ab:
                need = max(need, 8)
            if D & X.srcc and not (X.srcc == D):
                need = max(need, 6)
            if (D & X.wr) and not (X.srcc == D or D == X.wr):
                need = max(need, 6)
        if xk in VALUK and (P.srcc & X.wr):
            need = max(need, 3)
    if pk == "salu" and ("x", "m0") in P.wr and xk == "dma":
        need = max(need, 1)
    if pk == "salu" and ("x", "exec") in P.wr and xk == "mfma":
        need = max(need, 1)
    if pk == "vm_store" and len(P.data) >= 3:
        if xk in VALUK and (P.data & X.wr):
            need = max(need, 2)
        elif P.data & X.wr:
            need = max(need, 1)
    return need


def resolve_hazards(trace):
    for it in range(4):
        changed = False
        hist = []
        for X in trace:
            ex = expand(X)
            if not ex or X.kind == "label":
                continue
            pre = 0
            for e in ex[:-1]:
                pre += e[2] if e[0] == "nop" else 1
            if ex[-1][0] != "ins":
                hist.append((None, 1))
                continue
            d = pre
            for (P, st) in reversed(hist[-24:]):
                if d >= 12:
                    break
                if P is not None:
                    n = hazard_need(P, X)
                    if n > d:
                        X.pre_nop += n - d
                        changed = True
                        d = n
                d += st
            if pre:
                hist.append((None, pre if not changed else pre))
            st = 1
            if X.kind == "nop":
                st = int(X.text.split()[1]) + 1
            hist.append((X, st))
        if not changed:
            return
    raise RuntimeError("hazard resolution did not converge")


def emit(static):
    lines = []
    for X in static:
        if X.kind == "label":
            lines.append(X.text)
            continue
        for e in expand(X):
            lines.append("    " + e[1])
    return lines
```

```python
from fw import *


import os
SOFT_POST = True
RL_DEFAULT = int(os.environ.get('RL', '9'))


class Unit:
    def __init__(self, reads, mfmas, name=""):
        self.reads, self.mfmas, self.name = reads, mfmas, name


def cost(ins):
    if ins.kind == "trans":
        return 2
    if ins.kind in ("valu", "perm", "rfl"):
        return 1
    return 0


def schedule(tail, units, L, fillers, specials=(), opening=(), RL=None, tail_fill_start=0, flush_end=True,
             extra_reads=(), heavy=None, post=(), light=False, pre_reads=()):
    if RL is None:
        RL = RL_DEFAULT
    nun = len(units) - L
    spine = [m for u in tail for m in u.mfmas] + [m for u in units[:nun] for m in u.mfmas]
    n = len(spine)
    new_tail = units[nun:]
    ntail = sum(len(u.mfmas) for u in tail)
    rd_gap = {}
    pre = []
    pos = ntail
    if ntail == 0:
        pre = list(opening)
        opening = ()
    first_free = 1 if opening else 0
    nextg = first_free
    if ntail == 0:
        pre.extend(pre_reads)
        pre_reads = ()
    pr = list(pre_reads)
    for u in units:
        g = max(pos - RL, nextg)
        if ntail == 0 and pos < RL:
            pre.extend(u.reads)
        else:
            for r in u.reads:
                g = max(g, nextg)
                assert g < n and g < pos, ("read does not fit", u.name, g, n, pos)
                rd_gap.setdefault(g, []).append(r)
                nextg = g + 1
                g += 1
            if pr:
                rd_gap.setdefault(nextg, []).append(pr.pop(0))
                nextg += 1
        pos += len(u.mfmas)
    assert not pr
    F = [f for f in fillers]
    nf = len(F)
    pred_m = [-1] * nf
    succ_m = [n] * nf
    pred_f = [[] for _ in range(nf)]
    for i, (ins, rp) in enumerate(F):
        for j, m in enumerate(spine):
            conflict = (m.wr & (ins.rd | ins.wr)) or (m.rd & ins.wr)
            if not conflict:
                continue
            if j < rp:
                pred_m[i] = max(pred_m[i], j)
            else:
                succ_m[i] = min(succ_m[i], j)
        for k in range(i):
            o = F[k][0]
            if (o.wr & (ins.rd | ins.wr)) or (o.rd & ins.wr):
                pred_f[i].append(k)
    for i in range(nf - 1, -1, -1):
        for k in pred_f[i]:
            succ_m[k] = min(succ_m[k], succ_m[i])
    raw_m = [-1] * nf
    for i, (ins, rp) in enumerate(F):
        for j in range(min(rp, n)):
            if spine[j].wr & (ins.rd | ins.wr):
                raw_m[i] = j
    total = sum(cost(f[0]) for f in F)
    done = [False] * nf
    emitted_gap = [None] * nf
    out = list(pre)
    if pre:
        out.append(lslot())
    sp = list(specials)
    cum = 0

    def ready(i, g):
        if done[i]:
            return False
        if pred_m[i] > g:
            return False
        if raw_m[i] >= 0 and g - raw_m[i] < 3:
            return False
        for k in pred_f[i]:
            if not done[k]:
                return False
            if F[k][0].kind == "trans" and emitted_gap[k] == g and (F[k][0].wr & F[i][0].rd):
                return False
        return True

    def emit_f(i, g):
        nonlocal cum
        out.append(F[i][0])
        done[i] = True
        emitted_gap[i] = g
        cum += cost(F[i][0])

    def flush_before(g):
        for i in range(nf):
            if not done[i] and succ_m[i] <= g:
                stack = [i]
                order = []
                seen = set()

                def visit(x):
                    if x in seen or done[x]:
                        return
                    seen.add(x)
                    for k in pred_f[x]:
                        visit(k)
                    order.append(x)
                visit(i)
                for x in order:
                    assert pred_m[x] < g, ("impossible filler order", F[x][0].text, pred_m[x], g)
                    emit_f(x, g - 1)

    def pick(g, allow_trans, allow_v):
        for i in range(nf):
            if done[i]:
                continue
            k = F[i][0].kind
            if k == "trans" and not allow_trans:
                continue
            if k != "trans" and not allow_v:
                continue
            if ready(i, g):
                return i
        return None

    sp_gap = {}
    tmp = list(specials)
    for g in range(n):
        if (g == 0 and opening) or g in rd_gap:
            continue
        if tmp and tmp[0][0] <= g:
            sp_gap[g] = tmp.pop(0)[1]
    sp = tmp
    postq = []
    if SOFT_POST:
        for op in post:
            e_ = -1
            for g_, grp in sp_gap.items():
                for x in grp:
                    if (x.rd | x.wr) & op.wr or (x.wr & op.rd):
                        e_ = max(e_, g_)
            for g_, rds in rd_gap.items():
                for x in rds:
                    if (x.rd | x.wr) & op.wr or (x.wr & op.rd):
                        e_ = max(e_, g_)
            for x in sp:
                e_ = n
            if opening:
                for x in opening:
                    if (x.rd | x.wr) & op.wr or (x.wr & op.rd):
                        e_ = max(e_, 0)
            postq.append([op, e_])
        m_ = -1
        for it in postq:
            m_ = max(m_, it[1]); it[1] = m_
        post = []

    def soft(g, maxn=1):
        k = 0
        while postq and k < maxn and postq[0][1] < g:
            out.append(postq.pop(0)[0]); k += 1
        return k
    free = [g for g in range(n) if not ((g == 0 and opening) or g in rd_gap or g in sp_gap)]
    ntrans = sum(1 for f in F if f[0].kind == "trans")
    extra = max(0, ntrans - len(free))
    dsg = sorted(rd_gap.keys())
    te = set()
    if extra and heavy is None and light:
        cand = [g for g in dsg if g >= 6]
        for k in range(extra):
            te.add(cand[((2 * k + 1) * len(cand)) // (2 * extra)])
    for g in range(n):
        flush_before(g)
        out.append(spine[g])
        target = total * (g + 1) / max(n - tail_fill_start, 1) if heavy is None else heavy(g, n, total)
        if g == 0 and opening:
            out.extend(opening)
            out.append(lslot())
            continue
        if g in rd_gap:
            rds = rd_gap[g]
            out.append(rds[0])
            assert len(rds) == 1
            i = None
            if g in te:
                i = pick(g, True, False)
            if i is None:
                i = pick(g, False, True)
            if i is not None:
                emit_f(i, g)
            else:
                soft(g, 1)
            if not light:
                while cum + 0.5 < target - 1.5:
                    i = pick(g, False, True)
                    if i is None:
                        break
                    emit_f(i, g)
            continue
        if g in sp_gap:
            grp = list(sp_gap[g])
            if grp[-1].kind == "dma":
                out.extend(grp[:-1]); out.append(lslot()); out.append(grp[-1])
            else:
                out.append(lslot()); out.extend(grp)
            continue
        left = n - 1 - g
        pend = sum(1 for it in postq if it[1] < g)
        soft(g, 1 if pend <= left else 2)
        out.append(lslot())
        i = pick(g, True, False)
        if i is not None:
            emit_f(i, g)
        else:
            for _ in range(2):
                i = pick(g, False, True)
                if i is not None:
                    emit_f(i, g)
        if not light:
            while cum + 0.5 < target - 1.5:
                i = pick(g, True, True)
                if i is None:
                    break
                emit_f(i, g)
    for item in sp:
        out.extend(item[1])
    if flush_end:
        for i in range(nf):
            if not done[i]:
                stack = []

                def visit2(x):
                    if done[x]:
                        return
                    for k in pred_f[x]:
                        visit2(k)
                    emit_f(x, n)
                visit2(i)
    out.extend(it[0] for it in postq)
    out.extend(post)
    return out, new_tail
```

```python
import sys, os, copy, struct, math
sys.path.insert(0, os.path.dirname(os.path.abspath(__file__)))
from fw import *
from sched import *

NAME = "concat_heads__mha_block_cached__mha_block_cached__near_ridge"
STOP = os.environ.get("STOP", "")
OUTF = sys.argv[1] if len(sys.argv) > 1 else f"cdna_kernels/{NAME}.s"
E = lambda k, d=0: int(os.environ.get(k, d))
PROF = E("PROF")
LAG = E("LAG", 3)
MAPX = E("MAPX", 1)
os.environ.setdefault("WQ_NT", "1"); os.environ.setdefault("WO_NT", "1")
WQ_NT, WO_NT, NOX, NOWQ, NOKV, NOST = (E(k) for k in ("WQ_NT", "WO_NT", "NOX", "NOWQ", "NOKV", "NOST"))

VOFF = 8448
WOFF = 16896
XOFF = 25120
STG = 37408
NST = 4
LDS_BYTES = 163840
FLAGOFF = 1572864
PAIRWS = FLAGOFF + 8192
MAGIC = 0x5bd1e995
MAGICF = 0x2c1b3c6d

sX, sK, sV, sWq, sWo, sWS, sOut, sDbg = [s(8 + 4 * i, 4) for i in range(8)]
sW = s(40)
sJ = s(41)
sPair = s(42)
sKV = s(43)
sXo = s(44)
sWqo = s(45)
sStE = s(46)
sStO = s(47)
sCK = [s(74), s(75), s(76), s(77)]
sCW = [s(78), s(79)]
sCX = [s(80), s(81), s(82)]
sDelta = s(83)
sT0, sT1, sT2, sT3 = s(84), s(85), s(86), s(87)
sC = s(88, 2)
sCnt = s(90)
sHead = s(91)
sDump = s(92, 4)
sPrev = s(96)
sNext = s(97)
sXcc = s(98)
sSame = s(99)
sStart = s(100, 2)
sWoT = s(43)
sWoS = s(44)
sCO = [s(74), s(75), s(76), s(77)]

vTid = v(0)
vK, vV, vWq, vXr = v(1), v(2), v(3), v(4)
vKVd, vWqd, vWqd2 = v(5), v(6), v(7)
vXd = [v(8), v(9), v(10)]
vL = [v(11), v(12), v(13)]
vLane = v(14)
S = [v(16, 24), v(40, 24)]
P = [v(64, 12), v(76, 12)]
Qc = v(88, 48)
Oacc = v(136, 96)
vT = v(232, 16)
vRL = [v(248, 2), v(250, 2), v(252, 2)]
vT2 = v(254, 2)
vWoE, vWoO, vPst, vWod, vWod2 = v(1), v(2), v(3), v(6), v(7)
ACC = v(136, 48)
PK = v(184, 24)

Qacc = a(0, 96)
O0 = a(96, 48)
O1 = a(144, 48)
XS = [a(192, 12), a(204, 12)]
FR = [a(216 + 4 * i, 4) for i in range(8)]
OSLOT = [O0, O1, Qacc.sub(0, 48), Qacc.sub(48, 48)]


def St(b, kt, qt): return S[b].sub((kt * 3 + qt) * 4, 4)
def Pt(b, qt): return P[b].sub(qt * 4, 4)
def Qct(ks, qt): return Qc.sub((ks * 3 + qt) * 4, 4)
def tile(base, dt, qt): return base.sub((dt * 3 + qt) * 4, 4)


class G:
    fr = 0


def nextfrag():
    f = FR[G.fr % 8]
    G.fr += 1
    return f


def unit_qp(dt, par, xs, first):
    f = nextfrag()
    off = par * STG + (dt >> 1) * 256 + (dt & 1) * 8
    reads = [ds_tr(f.sub(0, 2), vWq, off), ds_tr(f.sub(2, 2), vWq, off + 1024)]
    ms = []
    for qt in range(3):
        D = tile(Qacc, dt, qt)
        ms.append(mfma(D, f, XS[xs].sub(qt * 4, 4), 0 if first else D))
    return Unit(reads, ms, f"QP{dt}")


def x_reads(par, xs):
    return [ds_b128(XS[xs].sub(qt * 4, 4), vXr, par * STG + qt * 1024) for qt in range(3)]


def unit_qk(kt, ks, par, sb, base=None, extra=0):
    f = nextfrag()
    off = par * STG + kt * 4224 + ks * 256 + extra
    reads = [ds_b128(f, base or vK, off)]
    ms = []
    for qt in range(3):
        D = St(sb, kt, qt)
        ms.append(mfma(D, f, Qct(ks, qt), 0 if ks == 0 else D))
    return Unit(reads, ms, f"QK{kt}{ks}")


def unit_pv(dt, par, pb, first=False):
    f = nextfrag()
    off = par * STG + (dt >> 1) * 256 + (dt & 1) * 32
    reads = [ds_tr(f.sub(0, 2), vV, off), ds_tr(f.sub(2, 2), vV, off + 4224)]
    ms = []
    for qt in range(3):
        D = tile(Oacc, dt, qt)
        ms.append(mfma(D, f, Pt(pb, qt), 0 if first else D))
    return Unit(reads, ms, f"PV{dt}")


def softmax_ops(sb, pb, first=False):
    tiles = []
    for kt in range(2):
        for qt in range(3):
            t = St(sb, kt, qt)
            ex = [vop("v_exp_f32", t[r], t[r]) for r in range(4)]
            rest = []
            for r in range(4):
                if first and kt == 0 and r == 0:
                    rest.append(vop("v_mov_b32", vL[qt], t[r]))
                else:
                    rest.append(vop("v_add_f32", vL[qt], t[r], vL[qt]))
            p = Pt(pb, qt)
            rest.insert(2, vop("v_cvt_pk_bf16_f32", p[2 * kt], t[0], t[1]))
            rest.append(vop("v_cvt_pk_bf16_f32", p[2 * kt + 1], t[2], t[3]))
            tiles.append((ex, rest))
    out = list(tiles[0][0])
    for i in range(6):
        nxt = tiles[i + 1][0] if i + 1 < 6 else []
        rest = tiles[i][1]
        k = 0
        for j in range(4):
            if j < len(nxt):
                out.append(nxt[j])
            out.append(rest[k]); k += 1
            if j >= 2:
                out.append(rest[k]); k += 1
    return out


def qconv_ops():
    ops = []
    n = 0
    for ks in range(4):
        for qt in range(3):
            for h in range(2):
                src = tile(Qacc, 2 * ks + h, qt)
                t = vT.sub((n % 4) * 4, 4)
                n += 1
                for r in range(4):
                    ops.append(vop("v_accvgpr_read_b32", t[r], src[r]))
                ops.append(vop("v_pk_mul_f32", t.sub(0, 2), t.sub(0, 2), sC))
                ops.append(vop("v_pk_mul_f32", t.sub(2, 2), t.sub(2, 2), sC))
                d = Qct(ks, qt)
                ops.append(vop("v_cvt_pk_bf16_f32", d[2 * h], t[0], t[1]))
                ops.append(vop("v_cvt_pk_bf16_f32", d[2 * h + 1], t[2], t[3]))
    return ops


def lreduce_ops():
    ops = []
    for qt in range(3):
        t = vT[12 + qt]
        l = vL[qt]
        ops.append(vop("v_mov_b32", t, l))
        ops.append(vop("v_permlane16_swap_b32", l, t))
        ops.append(vop("v_add_f32", l, l, t))
        ops.append(vop("v_mov_b32", t, l))
        ops.append(vop("v_permlane32_swap_b32", l, t))
        ops.append(vop("v_add_f32", l, l, t))
        ops.append(vop("v_rcp_f32", vRL[qt][0], l))
    return ops


def oepi_ops(dst, shift):
    ops = []
    sh = []
    if shift:
        for k in range(48):
            sh.append(vop("v_accvgpr_mov_b32", O0[k], O1[k]))
    n = 0
    for ks in range(4):
        for h in range(2):
            for qt in range(3):
                src = tile(Oacc, 2 * ks + h, qt)
                t = vT.sub((n % 2) * 6, 4)
                u = vT.sub((n % 2) * 6 + 4, 2)
                n += 1
                ops.append(vop("v_pk_mul_f32", t.sub(0, 2), src.sub(0, 2), vRL[qt], mods="op_sel_hi:[1,0]"))
                ops.append(vop("v_pk_mul_f32", t.sub(2, 2), src.sub(2, 2), vRL[qt], mods="op_sel_hi:[1,0]"))
                ops.append(vop("v_cvt_pk_bf16_f32", u[0], t[0], t[1]))
                ops.append(vop("v_cvt_pk_bf16_f32", u[1], t[2], t[3]))
                d = dst.sub((ks * 3 + qt) * 4, 4)
                ops.append(vop("v_accvgpr_write_b32", d[2 * h], u[0]))
                ops.append(vop("v_accvgpr_write_b32", d[2 * h + 1], u[1]))
    return sh + ops


def m0(stage_reg, const):
    return sop("s_add_u32", "m0", stage_reg, const)


def stw(par):
    return sStE if par == 0 else sStO


def dma_k(par, rel=3):
    return [[m0(stw(par), sCK[0]), dma(vKVd, sK, sKV, 0, nt=True, stage=rel)],
            [m0(stw(par), sCK[1]), dma(vKVd, sK, sKV, 1024, nt=True, stage=rel)]]


def dma_v(par, rel=3):
    return [[m0(stw(par), sCK[2]), dma(vKVd, sV, sKV, 0, nt=True, stage=rel)],
            [m0(stw(par), sCK[3]), dma(vKVd, sV, sKV, 1024, nt=True, stage=rel)]]


def dma_wq(par, rel=3):
    if NOWQ:
        return []
    return [[m0(stw(par), sCW[0]), dma(vWqd, sWq, sWqo, 0, nt=WQ_NT, stage=rel)],
            [m0(stw(par), sCW[1]), dma(vWqd2, sWq, sWqo, 0, nt=WQ_NT, stage=rel)]]


def dma_x(par, rel=3, consts=None):
    if NOX:
        return []
    c = consts or sCX
    return [[m0(stw(par), c[qt]), dma(vXd[qt], sX, sXo, 0, stage=rel)] for qt in range(3)]


XE = (3 * STG) ^ (1 * STG)
XO = (0 * STG) ^ (2 * STG)


def toggle_write(par):
    return [sop("s_xor_b32", stw(par), stw(par), XE if par == 0 else XO)]


def adv_kv(): return [sop("s_add_u32", sKV, sKV, 0 if E("KVHOT") else 8192)]
def adv_x(): return [sop("s_add_u32", sXo, sXo, 0 if E("XHOT") else 64), sop("s_and_b32", sXo, sXo, 1023)]


def adv_wq():
    return [sop("s_add_u32", sWqo, sWqo, 0 if E("WQHOT") else 32 * 8192),
            scmp("s_cmp_ge_u32", sWqo, 0x400000),
            sop("s_cselect_b32", sT0, 0x400000 - 256, 0),
            sop("s_sub_u32", sWqo, sWqo, sT0)]


def adv_read_pair(regs):
    val = [vop("v_add_u32", r, sDelta, r) for r in regs]
    sal = [sop("s_sub_u32", sDelta, 0, sDelta)]
    return val + sal


blocks = {}
layout = []
trace = []


def add_block(name, ins):
    blocks[name] = ins
    layout.append(name)


def put(name, code):
    add_block(name, code)
    trace.extend(code)


NSTAMP = [0]
STAMPS = []


def stamp(name):
    if not PROF:
        return []
    i = NSTAMP[0]
    NSTAMP[0] += 1
    STAMPS.append(name)
    assert i < 22
    return [raw("s_memtime s[48:49]", wr=[s(48, 2)]), wait_lg0(), sop("s_mov_b32", s(50 + i), s(48))]


def stamp_dump():
    if not PROF:
        return []
    o = [sop("s_lshl_b32", sT0, s(2), 2), sop("s_add_u32", sT0, sT0, sW), sop("s_lshl_b32", sT0, sT0, 8),
         vop("v_mov_b32", vT2[0], 0)]
    for i in range(NSTAMP[0]):
        o.append(vop("v_mov_b32", vT2[1], s(50 + i)))
        o.append(bstore(vT2[1], vT2[0], sDump, sT0, off=4 * i))
    if E("PROF2"):
        for i in range(7):
            o.append(vop("v_mov_b32", vT2[1], s(8 + i)))
            o.append(bstore(vT2[1], vT2[0], sDump, sT0, off=4 * (24 + i)))
    return o


def OPEN():
    return [interval(), vslot(), publish(0), barrier()]


def clone_tail(tail):
    return [Unit([], [copy.copy(m) for m in u.mfmas], u.name) for u in tail]


def loop_ctl(lbl):
    return [sop("s_sub_u32", sCnt, sCnt, 1), scmp("s_cmp_lg_u32", sCnt, 0), branch("s_cbranch_scc1", lbl)]


def dump(regs, base_idx=0):
    o = [sop("s_lshl_b32", sT0, s(2), 2), sop("s_add_u32", sT0, sT0, sW), sop("s_lshl_b32", sT0, sT0, 16),
         vop("v_lshlrev_b32", vT2[0], 2, vLane), nop(7), nop(7)]
    idx = base_idx
    for rr in regs:
        for k in range(rr.n):
            o.append(sop("s_add_u32", sT1, sT0, idx * 256))
            o.append(bstore(rr[k], vT2[0], sDump, sT1))
            idx += 1
    o.append(wait_all())
    return o


def finish():
    return [wait_all(), raw("s_endpgm")]


def prologue():
    o = []
    e = o.append
    e(raw("s_cmp_lt_u32 s2, 0x100", "salu", wr=["scc"]))
    e(branch("s_cbranch_scc1", "L_start"))
    e(raw("s_endpgm"))
    e(label("L_start"))
    e(raw("s_load_dwordx16 s[48:63], s[0:1], 0", wr=[s(48, 16)]))
    e(raw("s_load_dwordx4 s[64:67], s[0:1], 64", wr=[s(64, 4)]))
    e(raw("s_load_dwordx4 s[68:71], s[0:1], 80", wr=[s(68, 4)]))
    e(raw("s_load_dwordx2 s[72:73], s[0:1], 96", wr=[s(72, 2)]))
    w = vT[0]
    e(vop("v_lshrrev_b32", w, 6, vTid))
    e(vop("v_and_b32", vLane, 63, vTid))
    e(vop("v_readfirstlane_b32", sW, w))
    e(sop("s_and_b32", sT0, s(2), 7))
    e(sop("s_lshr_b32", sT1, s(2), 3))
    e(sop("s_lshr_b32", sT2, sT0, 2))
    if MAPX:
        e(sop("s_and_b32", sT3, sT0, 3))
        e(sop("s_lshl_b32", sT3, sT3, 2))
        e(sop("s_lshr_b32", sPair, sT1, 3))
        e(sop("s_add_u32", sT3, sT3, sPair))
        e(sop("s_and_b32", sJ, sT1, 7))
    else:
        e(sop("s_bfe_u32", sT3, sT0, 0x10001))
        e(sop("s_lshl_b32", sT3, sT3, 3))
        e(sop("s_and_b32", sPair, sT1, 7))
        e(sop("s_add_u32", sT3, sT3, sPair))
        e(sop("s_and_b32", sJ, sT0, 1))
        e(sop("s_lshl_b32", sJ, sJ, 2))
        e(sop("s_lshr_b32", sT1, sT1, 3))
        e(sop("s_add_u32", sJ, sJ, sT1))
    e(sop("s_lshl_b32", sPair, sT2, 4))
    e(sop("s_add_u32", sPair, sPair, sT3))
    e(raw("s_getreg_b32 s98, hwreg(20, 0, 4)", "salu", wr=[sXcc]))
    e(raw("s_memrealtime s[100:101]", wr=[sStart]))
    i16, g, r4, c4, t0, t1 = vT[1], vT[2], vT[3], vT[4], vT[5], vT[6]
    e(vop("v_and_b32", i16, 15, vLane))
    e(vop("v_lshrrev_b32", g, 4, vLane))
    e(vop("v_bfe_u32", r4, vLane, 2, 2))
    e(vop("v_and_b32", c4, 3, vLane))
    e(sop("s_movk_i32", sT0, 1056))
    e(vop("v_mul_lo_u32", vK, r4, sT0))
    e(vop("v_lshl_add_u32", vK, c4, 6, vK))
    e(vop("v_lshl_add_u32", vK, g, 4, vK))
    e(vop("v_mul_lo_u32", vV, g, sT0))
    e(vop("v_lshl_add_u32", vV, r4, 6, vV))
    e(vop("v_lshl_add_u32", vV, c4, 3, vV))
    e(vop("v_add_u32", vV, VOFF, vV))
    e(vop("v_lshlrev_b32", vWq, 11, g))
    e(vop("v_and_b32", t0, 1, g))
    e(vop("v_lshl_add_u32", vWq, t0, 3, vWq))
    e(vop("v_lshrrev_b32", t0, 1, g))
    e(vop("v_lshl_add_u32", vWq, t0, 4, vWq))
    e(vop("v_lshl_add_u32", vWq, r4, 6, vWq))
    e(vop("v_lshl_add_u32", vWq, c4, 4, vWq))
    e(vop("v_add_u32", vWq, WOFF, vWq))
    e(vop("v_sub_u32", t0, 0, r4))
    e(vop("v_and_b32", t0, 3, t0))
    e(vop("v_xor_b32", t0, t0, g))
    e(vop("v_mul_u32_u24", vXr, 3072, w))
    e(vop("v_lshl_add_u32", vXr, i16, 6, vXr))
    e(vop("v_lshl_add_u32", vXr, t0, 4, vXr))
    e(vop("v_add_u32", vXr, XOFF, vXr))
    e(vop("v_lshlrev_b32", vKVd, 11, w))
    e(vop("v_lshl_add_u32", vKVd, r4, 8, vKVd))
    e(vop("v_lshl_add_u32", vKVd, g, 6, vKVd))
    e(vop("v_lshl_add_u32", vKVd, c4, 4, vKVd))
    e(vop("v_lshlrev_b32", vWqd, 16, w))
    e(vop("v_lshl_add_u32", vWqd, r4, 13, vWqd))
    e(vop("v_lshl_add_u32", vWqd, g, 6, vWqd))
    e(vop("v_lshl_add_u32", vWqd, c4, 4, vWqd))
    e(vop("v_add_u32", vWqd2, 32768, vWqd))
    e(vop("v_sub_u32", t0, 0, g))
    e(vop("v_and_b32", t0, 3, t0))
    e(vop("v_xor_b32", t0, t0, c4))
    e(vop("v_lshrrev_b32", t1, 2, vLane))
    e(vop("v_mul_u32_u24", vXd[0], 48, w))
    e(vop("v_add_u32", vXd[0], vXd[0], t1))
    e(vop("v_lshlrev_b32", vXd[0], 10, vXd[0]))
    e(vop("v_lshl_add_u32", vXd[0], t0, 4, vXd[0]))
    e(vop("v_add_u32", vXd[1], 16384, vXd[0]))
    e(vop("v_add_u32", vXd[2], 32768, vXd[0]))
    e(sop("s_mul_i32", sCK[0], sW, 2 * 1056))
    e(sop("s_add_u32", sCK[1], sCK[0], 32))
    e(sop("s_add_u32", sCK[2], sCK[0], VOFF))
    e(sop("s_add_u32", sCK[3], sCK[0], VOFF + 32))
    e(sop("s_lshl_b32", sCW[0], sW, 11))
    e(sop("s_and_b32", sT0, sW, 1)); e(sop("s_lshl_b32", sT0, sT0, 3)); e(sop("s_add_u32", sCW[0], sCW[0], sT0))
    e(sop("s_lshr_b32", sT0, sW, 1)); e(sop("s_lshl_b32", sT0, sT0, 4)); e(sop("s_add_u32", sCW[0], sCW[0], sT0))
    e(sop("s_add_u32", sCW[0], sCW[0], WOFF))
    e(sop("s_add_u32", sCW[1], sCW[0], 1024))
    e(sop("s_mul_i32", sCX[0], sW, 3072)); e(sop("s_add_u32", sCX[0], sCX[0], XOFF))
    e(sop("s_add_u32", sCX[1], sCX[0], 1024)); e(sop("s_add_u32", sCX[2], sCX[0], 2048))
    c = struct.unpack("<I", struct.pack("<f", math.log2(math.e) / math.sqrt(128.0)))[0]
    e(sop("s_mov_b32", sC[0], c)); e(sop("s_mov_b32", sC[1], c))
    e(wait_lg0())
    e(scmp("s_cmp_eq_u32", sT2, 0))
    px, pk, pv_, pq, po = s(48, 2), s(50, 2), s(52, 2), s(54, 2), s(56, 2)
    e(sop("s_cselect_b64", px, s(48, 2), s(58, 2)))
    e(sop("s_cselect_b64", pk, s(50, 2), s(60, 2)))
    e(sop("s_cselect_b64", pv_, s(52, 2), s(62, 2)))
    e(sop("s_cselect_b64", pq, s(54, 2), s(64, 2)))
    e(sop("s_cselect_b64", po, s(56, 2), s(66, 2)))

    def srd(dst, ptr, offreg, size):
        e(sop("s_add_u32", dst[0], ptr[0], offreg))
        e(sop("s_addc_u32", dst[1], ptr[1], 0))
        e(sop("s_mov_b32", dst[2], size))
        e(sop("s_mov_b32", dst[3], 0x20000))

    t, t2 = s(58), s(59)
    e(sop("s_mul_i32", t, sT3, 196608)); srd(sX, px, t, 196608)
    e(sop("s_lshl_b32", t, sJ, 10)); e(sop("s_sub_u32", t2, 4194304, t)); srd(sWq, pq, t, t2)
    e(sop("s_lshl_b32", t, sT3, 5)); e(sop("s_lshl_b32", t2, sJ, 2)); e(sop("s_add_u32", t, t, t2))
    e(sop("s_lshl_b32", t, t, 17))
    srd(sK, pk, t, 524288)
    e(sop("s_add_u32", sV[0], pv_[0], t)); e(sop("s_addc_u32", sV[1], pv_[1], 0))
    e(sop("s_sub_u32", sV[0], sV[0], 16384)); e(sop("s_subb_u32", sV[1], sV[1], 0))
    e(sop("s_mov_b32", sV[2], 524288 + 16384)); e(sop("s_mov_b32", sV[3], 0x20000))
    e(sop("s_lshl_b32", t, sJ, 19)); srd(sWo, po, t, 524288)
    e(sop("s_mul_i32", t, sT3, 393216)); e(sop("s_lshl_b32", t2, sT2, 10)); e(sop("s_add_u32", t, t, t2))
    e(sop("s_sub_u32", t2, 6291456, t)); srd(sOut, s(68, 2), t, t2)
    e(sop("s_mul_i32", t, sPair, PAIRWS)); e(sop("s_add_u32", t, t, E("WSOFF", 0) << 20)); srd(sWS, s(72, 2), t, PAIRWS)
    e(sop("s_mov_b32", t, 0)); srd(sDbg, s(70, 2), t, 256)
    e(sop("s_mov_b32", t, 64 << 20)); srd(sDump, s(72, 2), t, 64 << 20)
    return o


def publish_xcc():
    t0, t1 = vT[12], vT[13]
    return [sop("s_add_u32", sT0, sXcc, 1), vop("v_mov_b32", t0, sT0),
            sop("s_lshl_b32", sT0, sPair, 3), sop("s_add_u32", sT0, sT0, sJ), vop("v_mov_b32", t1, sT0),
            scmp("s_cmp_lg_u32", sW, 0), branch("s_cbranch_scc1", "L_noxcc"),
            raw("s_mov_b64 exec, 1", "salu", wr=["exec"]),
            cond(bstore_op("buffer_store_byte", t0, t1, sDbg, 0, flags="sc1")),
            raw("s_mov_b64 exec, -1", "salu", wr=["exec"]),
            label("L_noxcc")]


def cond(i):
    i.note = "cond"
    return i


def q0_phase():
    init = []
    e = init.append
    e(sop("s_mov_b32", sWqo, 0)); e(sop("s_mov_b32", sXo, 0))
    for st in range(3):
        e(sop("s_mov_b32", sStE, st * STG))
        for grp in dma_wq(0, st + 1) + dma_x(0, st + 1):
            init.extend(grp)
        e(sop("s_add_u32", sWqo, sWqo, 32 * 8192)); e(sop("s_add_u32", sXo, sXo, 64))
    e(sop("s_mov_b32", sStE, 0))
    init.extend([m0(sStE, sCK[2]), dma(vKVd, sK, 0, 0, nt=True, stage=16),
                 m0(sStE, sCK[3]), dma(vKVd, sK, 0, 1024, nt=True, stage=16)])
    if not E("NOPF"):
        t0, t1 = vT[12], vT[13]
        if MAPX:
            e(sop("s_mul_i32", sT0, sJ, 192)); e(sop("s_mul_i32", sT1, sW, 48)); e(sop("s_add_u32", sT0, sT0, sT1))
            e(vop("v_add_u32", t0, sT0, vLane)); e(vop("v_lshlrev_b32", t0, 7, t0))
            e(bload(vT[14], t0, sX, 0))
            e(sop("s_and_b32", sT0, sPair, 3)); e(sop("s_lshl_b32", sT0, sT0, 7)); e(sop("s_lshl_b32", sT1, sW, 5))
            e(sop("s_add_u32", sT0, sT0, sT1))
            e(vop("v_lshrrev_b32", t1, 1, vLane)); e(vop("v_add_u32", t1, sT0, t1)); e(vop("v_lshlrev_b32", t1, 13, t1))
            e(vop("v_and_b32", t0, 1, vLane)); e(vop("v_lshl_add_u32", t1, t0, 7, t1))
            e(bload(vT[15], t1, sWq, 0, flags="nt" if WQ_NT else ""))
        else:
            e(sop("s_and_b32", sT0, sJ, 3)); e(sop("s_mul_i32", sT0, sT0, 384)); e(sop("s_mul_i32", sT1, sW, 96))
            e(sop("s_add_u32", sT0, sT0, sT1))
            e(vop("v_add_u32", t0, sT0, vLane)); e(vop("v_lshlrev_b32", t0, 7, t0))
            e(bload(vT[14], t0, sX, 0))
            e(vop("v_add_u32", t0, 8192, t0))
            e(bload(vT[15], t0, sX, 0))
            e(sop("s_and_b32", sT0, sPair, 7)); e(sop("s_lshl_b32", sT0, sT0, 6)); e(sop("s_lshl_b32", sT1, sW, 4))
            e(sop("s_add_u32", sT0, sT0, sT1))
            e(vop("v_bfe_u32", t1, vLane, 1, 4)); e(vop("v_add_u32", t1, sT0, t1)); e(vop("v_lshlrev_b32", t1, 13, t1))
            e(vop("v_and_b32", t0, 1, vLane)); e(vop("v_lshl_add_u32", t1, t0, 7, t1))
            e(bload(vT[11], t1, sWq, 0, flags="nt" if WQ_NT else ""))
    e(sop("s_mov_b32", sStE, 3 * STG)); e(sop("s_mov_b32", sStO, 0))
    e(sop("s_mov_b32", sDelta, 2 * STG))
    e(sop("s_mov_b32", sKV, 8192))
    for k in range(96):
        e(vop("v_accvgpr_write_b32", Qacc[k], 0))
    put("q0_init", stamp("start") + init + publish_xcc() + stamp("issued"))

    def step(T, tail, par, wq_real=True, kv=False, vv=False, L=3):
        units = [unit_qp(dt, par, par, False) for dt in range(8)]
        groups = []
        if kv:
            groups += dma_k(par)
        if vv:
            groups += dma_v(par)
        groups += dma_wq(par) + dma_x(par)
        n = sum(len(u.mfmas) for u in tail) + 3 * (8 - L)
        sp = [(2 + (k * (n - 3)) // len(groups), grp) for k, grp in enumerate(groups)]
        post = adv_wq() + adv_x() + toggle_write(par)
        if kv:
            post += adv_kv()
        if par == 1:
            post += adv_read_pair([vWq, vXr])
        return schedule(tail, units, L, [], sp, OPEN(), post=post, pre_reads=x_reads(par, par), light=True)

    c0, t = step(0, [], 0)
    c1, t1 = step(1, t, 1)
    put("q0_first", c0 + c1 + [sop("s_mov_b32", sCnt, 5)])
    c0, t = step(2, clone_tail(t1), 0)
    c1, t2 = step(3, t, 1)
    body = [label("L_Q0")] + c0 + c1 + loop_ctl("L_Q0")
    add_block("q0_loop", body)
    trace.extend(body * 5)
    c0, t = step(12, clone_tail(t1), 0)
    c1, t = step(13, t, 1, kv=True)
    c2, t = step(14, t, 0, kv=True, vv=True)
    c3, t = step(15, t, 1, kv=True, vv=True, L=0)
    put("q0_last", c0 + c1 + c2 + c3)


def qk0_units(par, base=None, extra=0):
    order = [(kt, ks) for ks in range(4) for kt in range(2)]
    return [unit_qk(kt, ks, par, 0, base, extra) for (kt, ks) in order]


def generic_units(par, i_par, qp=True, qk=True, pv=True, qp_first=False, pv_first=False, pv_early=False):
    sb_next = (i_par + 1) & 1
    pb_prev = (i_par + 1) & 1
    QP = (lambda d: unit_qp(d, par, 0, qp_first))
    QK = (lambda n: unit_qk(n >> 2, n & 3, par, sb_next))
    PV = (lambda d: unit_pv(d, par, pb_prev, pv_first))
    q, k, p = "QP", "QK", "PV"
    if qp and qk and pv and not pv_early:
        seq = [(k, 0), (p, 0), (q, 0), (q, 1), (k, 1), (q, 2), (q, 3), (p, 1), (q, 4), (q, 5), (k, 2), (q, 6),
               (q, 7), (p, 2), (p, 3), (k, 3), (p, 4), (k, 4), (p, 5), (p, 6), (p, 7), (k, 5), (k, 6), (k, 7)]
    elif qp and qk and pv:
        seq = [(p, 0), (p, 1), (p, 2), (p, 3), (q, 0), (p, 4), (p, 5), (q, 1), (p, 6), (p, 7), (q, 2), (q, 3),
               (k, 0), (q, 4), (q, 5), (k, 1), (q, 6), (q, 7), (k, 2), (k, 3), (k, 4), (k, 5), (k, 6), (k, 7)]
    elif qk and pv and not pv_early:
        seq = [(p, 0), (k, 0), (p, 1), (k, 1), (p, 2), (k, 2), (p, 3), (k, 3), (p, 4), (k, 4), (p, 5), (p, 6),
               (p, 7), (k, 5), (k, 6), (k, 7)]
    elif qk and pv:
        seq = [(p, n) for n in range(8)] + [(k, n) for n in range(8)]
    elif qp and qk:
        seq = [(k, 0), (k, 1), (q, 0), (q, 1), (k, 2), (q, 2), (q, 3), (k, 3), (q, 4), (q, 5), (k, 4),
               (q, 6), (q, 7), (k, 5), (k, 6), (k, 7)]
    elif pv:
        seq = [(p, n) for n in range(8)]
    elif qp:
        seq = [(q, n) for n in range(8)]
    fn = {"QP": QP, "QK": QK, "PV": PV}
    return [fn[kk](n) for (kk, n) in seq]


def spread(groups, n, start=3):
    end = n - max(4, n // 7)
    return [(start + (k * (end - start)) // max(len(groups), 1), grp) for k, grp in enumerate(groups)]


def step_vmem(par, qp, kv=True, wo=False):
    if wo:
        return wo_pre_groups(*wo), []
    groups = []
    post = []
    if kv and not NOKV:
        groups += dma_k(par) + dma_v(par)
    if kv:
        post += adv_kv()
    if qp:
        groups += dma_wq(par) + dma_x(par)
        post += adv_wq() + adv_x()
    post += toggle_write(par)
    return groups, post


def gen_step(tail, i_par, qp=True, qk=True, pv=True, qp_first=False, pv_first=False, sm_first=False,
             oepi=None, L=None, last_of_pair=False, wo=False):
    if L is None:
        L = LAG
    par = i_par
    units = generic_units(par, i_par, qp, qk, pv, qp_first, pv_first, oepi is not None)
    ntail = sum(len(u.mfmas) for u in tail)
    sm = softmax_ops(i_par, i_par, sm_first)
    nsp = ntail + sum(len(u.mfmas) for u in units[:len(units) - L])
    if oepi is not None:
        eo = oepi_ops(*oepi)
        fill = []
        ia = ib = 0
        while ia < len(sm) or ib < len(eo):
            if ia < len(sm):
                fill.append((sm[ia], ntail)); ia += 1
            for _ in range(3):
                if ib < len(eo):
                    fill.append((eo[ib], nsp)); ib += 1
    else:
        fill = [(op, ntail) for op in sm]
    groups, post = step_vmem(par, qp, True, wo)
    if last_of_pair:
        post += adv_read_pair([vK, vV, vWq, vXr] if qp else [vK, vV])
    code, nt = schedule(tail, units, L, fill, spread(groups, nsp), OPEN(), post=post,
                        pre_reads=x_reads(par, 0) if qp else (), light=(oepi is None))
    return code, nt


def check_ops():
    return []


def block_C(tail, qp, final=False):
    code14, t = gen_step(tail, 0, qp=qp, wo=((0, 1), 78) if final else False)
    if final:
        code14 = wo_setup() + code14
    par = 1
    ntail = sum(len(u.mfmas) for u in t)
    sm = softmax_ops(1, 1)
    fill = [(op, ntail) for op in sm] + [(op, ntail) for op in lreduce_ops()]
    if final:
        unitsA = generic_units(par, 1, qp=False, qk=False, pv=True)
    else:
        unitsA = generic_units(par, 1, qp=True, qk=False, pv=False)
    nsp = ntail + sum(len(u.mfmas) for u in unitsA)
    groups, post = step_vmem(par, qp, True, ((2, 3), 79) if final else False)
    codeA, tA = schedule(t, unitsA, 0, fill, spread(groups, nsp), OPEN(), post=post,
                         pre_reads=x_reads(par, 0) if qp else ())
    codeA += check_ops()
    if final:
        return code14 + codeA, []
    pvu = generic_units(par, 1, qp=False, qk=False, pv=True)
    units = pvu + qk0_units(par)
    fillB = [(op, 24) for op in qconv_ops()]
    codeB, tB = schedule([], units, 3, fillB, [], [], post=adv_read_pair([vK, vV, vWq, vXr]))
    return code14 + codeA + codeB, tB


def attention():
    vB = vT2[0]
    pre = [vop("v_add_u32", vB, VOFF, vK), sop("s_mov_b32", sHead, 0)]
    put("x01", stamp("q0done") + pre)
    qku = qk0_units(0, vB)
    code, tail0x = schedule([], qku, 0, [(op, 0) for op in qconv_ops()], [], [])
    put("conv0", code + [wait_lg0()])
    if STOP == "q0":
        put("dump", dump([Qc, S[0]]) + finish())
        return
    fr_save = G.fr
    G.fr = (G.fr - 8) % 8 + 8
    tailC = qk0_units(1)[-3:]
    fr0 = G.fr % 8
    assert fr0 == fr_save % 8
    c0, t = gen_step([], 0, pv=False, qp_first=True, sm_first=True)
    c1, tA = gen_step(t, 1, pv_first=True, last_of_pair=True)
    A0 = stamp("conv0done") + c0 + c1 + [sop("s_mov_b32", sCnt, 6)] + stamp("A0done") + [branch("s_branch", "L_B")]
    c0, t = gen_step(clone_tail(tailC), 0, qp_first=True, sm_first=True, oepi=(O1, True))
    c1, tA2 = gen_step(t, 1, pv_first=True, last_of_pair=True)
    A12 = [label("L_A12")] + c0 + c1 + [sop("s_mov_b32", sCnt, 6)] + stamp("A12done(last)")
    c0, t = gen_step(clone_tail(tA), 0)
    c1, tB = gen_step(t, 1, last_of_pair=True)
    B = [label("L_B")] + c0 + c1 + loop_ctl("L_B")
    C, tC = block_C(clone_tail(tA), True)
    C = stamp("Bdone(last)") + C + stamp("Cdone(last)")
    C += [sop("s_add_u32", sHead, sHead, 1), scmp("s_cmp_lt_u32", sHead, 3), branch("s_cbranch_scc1", "L_A12")]
    assert [m.text for u in tC for m in u.mfmas] == [m.text for u in tailC for m in u.mfmas]
    assert [m.text for u in tA for m in u.mfmas] == [m.text for u in tB for m in u.mfmas] == \
           [m.text for u in tA2 for m in u.mfmas]
    c0, t = gen_step(clone_tail(tailC), 0, qp=False, sm_first=True, oepi=(Qacc.sub(0, 48), False))
    c1, tA3 = gen_step(t, 1, qp=False, pv_first=True, last_of_pair=True)
    A3 = c0 + c1 + [sop("s_mov_b32", sCnt, 6)] + stamp("A3done")
    c0, t = gen_step(clone_tail(tA3), 0, qp=False)
    c1, tB3 = gen_step(t, 1, qp=False, last_of_pair=True)
    B3 = [label("L_B3")] + c0 + c1 + loop_ctl("L_B3")
    C3, _ = block_C(clone_tail(tA3), False, final=True)
    units = generic_units(0, 0, qp=False, qk=False, pv=True)
    fillE = [(op, 24) for op in oepi_ops(Qacc.sub(48, 48), False)]
    groups, post = step_vmem(0, False, True, ((4,), 80))
    Eb, _ = schedule([], units, 0, fillE, spread(groups, 24, 1), OPEN(), post=post)
    C3 = stamp("B3done") + C3 + adv_read_pair([vK, vV]) + Eb + stamp("C3done")
    for nm, b in (("A0", A0), ("A12", A12), ("B", B), ("C", C), ("A3", A3), ("B3", B3), ("C3", C3)):
        add_block(nm, b)
    trace.extend(A0 + B * 6 + C + (A12 + B * 6 + C) * 2 + A3 + B3 * 6 + C3)
    if STOP == "att":
        put("dump", dump([O0, O1, Qacc]) + finish())


RB = 32768
WD = 5
SUM = v(16, 48)
LD = v(64, 24)
SEL = vT.sub(0, 6)
vF = v(88, 2)
vFl = v(90)
vThrHi = v(91)
vStamp = v(92, 2)
vA, vB_, vC = v(94), v(95), v(97)
vZero = v(96)
vLim = v(98)
sW2K = s(74)
sBaseM, sBaseP = s(75), s(76)
sTog = s(77)
sFlagMine = s(78)
sFlagDst = s(79)
sSrcOff = s(80)
sSrcBit = s(81)
sPos = s(82)
sWoCur = s(72)
sMask = s(70, 2)
sKn = s(68)
sDo = s(69)
sPrev2 = s(67)
sFlagBase = s(66)
sSrcOff2 = s(65)
sDiag = s(64)
sPlLds = s(20)
sFlLds = s(21)
vFlD, vFlR, vPlR = v(99), v(100), v(101)


def unit_wo(tl, ks2, nt, q):
    f = nextfrag()
    t8 = 2 * q + tl
    ks = 2 * t8 + ks2
    base = vWoE if (nt & 1) == 0 else vWoO
    off = q * 16384 + tl * 8192 + ks2 * 4096 + (nt >> 1) * 512
    reads = [ds_tr(f.sub(0, 2), base, off), ds_tr(f.sub(2, 2), base, off + 2048)]
    ms = []
    for qt in range(3):
        D = ACC.sub((nt * 3 + qt) * 4, 4)
        B = OSLOT[ks >> 2].sub(((ks & 3) * 3 + qt) * 4, 4)
        ms.append(mfma(D, f, B, 0 if ks == 0 else D))
    return Unit(reads, ms, f"WO{t8}_{ks2}_{nt}")


def dma_wo(base, imm, rel):
    c = sWoCur
    return [[sop("s_add_u32", "m0", base, imm), sop("s_add_u32", c, sWoT, sWoS),
             dma(vWod, sWo, c, 0, nt=WO_NT, stage=rel)],
            [sop("s_add_u32", "m0", base, imm + 1024), dma(vWod2, sWo, c, 0, nt=WO_NT, stage=rel)],
            [sop("s_add_u32", "m0", base, imm + 8192), sop("s_add_u32", c, c, 65536),
             dma(vWod, sWo, c, 0, nt=WO_NT, stage=rel)],
            [sop("s_add_u32", "m0", base, imm + 8192 + 1024), dma(vWod2, sWo, c, 0, nt=WO_NT, stage=rel)]]


def adv_wo():
    if E("WOHOT"):
        return []
    return [sop("s_add_u32", sWoT, sWoT, 131072),
            scmp("s_cmp_ge_u32", sWoT, 524288),
            sop("s_cselect_b32", sWoT, 0, sWoT),
            sop("s_cselect_b32", sT0, 128, 0),
            sop("s_add_u32", sWoS, sWoS, sT0),
            sop("s_and_b32", sWoS, sWoS, 1023)]


def wo_pre_groups(us, T):
    g = []
    for u in us:
        grp = dma_wo(sW2K, RB + u * 16384, 81 + u - T)
        grp[-1] = grp[-1] + adv_wo()
        g += grp
    return g


def wo_setup():
    o = []
    e = o.append
    t0, t1 = vT[12], vT[13]
    e(vop("v_bfe_u32", t0, vLane, 2, 3))
    e(vop("v_lshrrev_b32", t1, 6, vTid))
    e(vop("v_lshl_add_u32", t1, t1, 4, t0))
    e(vop("v_lshlrev_b32", vWod, 10, t1))
    e(vop("v_lshrrev_b32", t1, 5, vLane))
    e(vop("v_lshl_add_u32", vWod, t1, 6, vWod))
    e(vop("v_lshrrev_b32", t0, 2, t0))
    e(vop("v_lshlrev_b32", t0, 1, t0))
    e(vop("v_and_b32", t1, 3, vLane))
    e(vop("v_xor_b32", t1, t1, t0))
    e(vop("v_lshl_add_u32", vWod, t1, 4, vWod))
    e(vop("v_add_u32", vWod2, 8192, vWod))
    e(sop("s_lshl_b32", sW2K, sW, 11))
    e(sop("s_mov_b32", sWoT, 0))
    e(sop("s_add_u32", sWoS, sJ, 1)); e(sop("s_and_b32", sWoS, sWoS, 7)); e(sop("s_lshl_b32", sWoS, sWoS, 7))
    return o


def wo_read_setup():
    o = []
    e = o.append
    t0, t1 = vT[12], vT[13]
    e(raw("s_memrealtime s[84:85]", wr=[s(84, 2)]))
    e(vop("v_lshrrev_b32", t0, 5, vLane))
    e(vop("v_lshlrev_b32", t0, 10, t0))
    e(vop("v_bfe_u32", t1, vLane, 2, 3))
    e(vop("v_lshl_add_u32", t0, t1, 6, t0))
    e(vop("v_and_b32", t1, 3, vLane))
    e(vop("v_lshl_add_u32", t0, t1, 3, t0))
    e(vop("v_add_u32", t0, RB, t0))
    e(vop("v_bfe_u32", t1, vLane, 4, 1))
    e(vop("v_lshl_add_u32", vWoE, t1, 5, t0))
    e(vop("v_xor_b32", t1, 1, t1))
    e(vop("v_lshl_add_u32", vWoO, t1, 5, t0))
    e(vop("v_lshrrev_b32", t0, 6, vTid))
    e(vop("v_mul_u32_u24", t0, 6144, t0))
    e(vop("v_lshl_add_u32", vPst, vLane, 4, t0))
    e(vop("v_and_b32", vFl, 7, vLane)); e(vop("v_lshlrev_b32", vFl, 3, vFl))
    e(vop("v_mov_b32", vZero, 0))
    e(sop("s_mul_i32", sPlLds, sW, 6144)); e(sop("s_lshl_b32", sFlLds, sW, 10)); e(sop("s_add_u32", sFlLds, sFlLds, FLB))
    e(vop("v_and_b32", vFlD, 3, vLane)); e(vop("v_lshlrev_b32", vFlD, 4, vFlD))
    e(vop("v_add_u32", vFlR, sFlLds, vFl))
    e(vop("v_lshlrev_b32", vPlR, 4, vLane)); e(vop("v_add_u32", vPlR, sPlLds, vPlR))
    e(vop("v_mov_b32", vLim, 0x40000000))
    e(sop("s_add_u32", sStart[0], sStart[0], 2000)); e(sop("s_addc_u32", sStart[1], sStart[1], 0))
    e(vop("v_mov_b32", vThrHi, sStart[1]))
    e(sop("s_lshl_b32", sT2, sPair, 3)); e(vop("v_mov_b32", vA, sT2))
    e(bload(vF, vA, sDbg, 0, flags="sc1"))
    e(wait_all())
    e(vop("v_mov_b32", vStamp[0], s(84)))
    e(sop("s_xor_b32", sT2, s(84), s(85))); e(sop("s_xor_b32", sT2, sT2, MAGIC))
    e(vop("v_mov_b32", vStamp[1], sT2))
    e(vop("v_readfirstlane_b32", s(84), vF[0])); e(vop("v_readfirstlane_b32", s(85), vF[1]))
    e(sop("s_add_u32", sT2, sXcc, 1)); e(sop("s_mul_i32", sT2, sT2, 0x01010101))
    e(scmp("s_cmp_eq_u32", s(84), sT2)); e(sop("s_cselect_b32", sSame, 1, 0))
    e(scmp("s_cmp_eq_u32", s(85), sT2)); e(sop("s_cselect_b32", sSame, sSame, 0))
    if E("FORCESLOW"):
        e(sop("s_mov_b32", sSame, 0))
    e(sop("s_mul_i32", sPrev, sJ, 9 * 24576)); e(sop("s_add_u32", sPrev2, sPrev, 4096))
    e(sop("s_mov_b32", sDiag, sPrev))
    e(sop("s_mov_b32", sNext, sJ))
    e(sop("s_mov_b32", sPos, 1)); e(sop("s_mov_b32", sKn, 1)); e(sop("s_mov_b32", sDo, 0))
    e(sop("s_lshl_b32", sT0, sJ, 2)); e(sop("s_add_u32", sT0, sT0, sW)); e(sop("s_lshl_b32", sT0, sT0, 7))
    e(sop("s_add_u32", sFlagMine, sT0, FLAGOFF))
    e(sop("s_lshl_b32", sT0, sJ, 3)); e(sop("s_add_u32", sFlagBase, sT0, FLAGOFF))
    e(sop("s_mov_b32", sTog, 0)); e(sop("s_mov_b32", sBaseM, sW2K)); e(sop("s_mov_b32", sBaseP, sW2K))
    e(sop("s_mov_b32", sDelta, 65536))
    t0, t1 = vT[8], vT[9]
    o += [vop("v_mov_b32", SEL[0], 0), vop("v_mov_b32", SEL[1], 0), vop("v_mov_b32", SEL[4], 0),
          vop("v_mov_b32", SEL[5], 0),
          vop("v_lshrrev_b32", t0, 4, vLane), vop("v_bfe_u32", t1, vLane, 2, 2),
          vcmp("v_cmp_eq_u32", "vcc", t0, t1),
          vop("v_and_b32", t0, 1, vLane), vop("v_lshlrev_b32", t0, 4, t0),
          vop("v_mov_b32", t1, 0x3f80), vop("v_lshlrev_b32", t0, t0, t1),
          vop("v_cndmask_b32", t0, 0, t0),
          vop("v_bfe_u32", t1, vLane, 1, 1),
          vcmp("v_cmp_eq_u32", "vcc", 0, t1),
          vop("v_cndmask_b32", SEL[2], 0, t0),
          vop("v_sub_u32", SEL[3], t0, SEL[2])]
    for k in range(48):
        e(vop("v_mov_b32", SUM[k], 0))
    return o


PLB = 0
FLB = 24576


def flag_load():
    return bload(vF, vFl, sWS, sFlagMine, flags="sc1")


def flag_dma(rel):
    return [sop("s_mov_b32", "m0", sFlLds), dma(vFlD, sWS, sFlagMine, 0, stage=rel, flags="sc1")]


def flag_read():
    return ds_b64(vF, vFlR, 0)


def part_dma(rels):
    o = []
    for f in range(6):
        o.append([sop("s_add_u32", "m0", sPlLds, f * 1024), sop("s_add_u32", sT3, sSrcOff, f * 1024),
                  dma(vPst, sWo if E("PLHOT") else sWS, 0 if E("PLHOT") else sT3, 0, stage=rels[f],
                      flags=os.environ.get("PLF", "sc1").replace("_", " ").strip())])
    return o


def part_reads():
    return [ds_b128(LD.sub(4 * f, 4), vPlR, f * 1024) for f in range(6)]


def flag_eval():
    VCC = [("x", "vcc")]
    return [vop("v_xor_b32", vA, vF[0], vF[1]),
            Ins(f"v_subrev_co_u32 {vB_}, vcc, {sStart[0]}, {vF[0]}", "valu", rd=regs_of(sStart[0]) + regs_of(vF[0]),
                wr=regs_of(vB_) + VCC),
            nop(1),
            Ins(f"v_addc_co_u32 {vC}, vcc, 0, {vThrHi}, vcc", "valu", rd=regs_of(vThrHi) + VCC, wr=regs_of(vC) + VCC),
            vop("v_xor_b32", vA, vA, vC),
            vcmp("v_cmp_gt_u32", sMask, vLim, vB_),
            vcmp("v_cmp_eq_u32", "vcc", MAGIC, vA),
            nop(3),
            Ins(f"s_and_b32 {sMask[0]}, {sMask[0]}, vcc_lo", "salu", rd=regs_of(sMask[0]) + VCC,
                wr=regs_of(sMask[0]) + [("x", "scc")]),
            sop("s_and_b32", sMask[0], sMask[0], sSrcBit)] + ([scmp("s_cmp_eq_u32", 0, 0)] if E("NOCHK") else [])


def src_setup(k):
    return [sop("s_sub_u32", sT0, sJ, k), sop("s_and_b32", sT0, sT0, 7),
            sop("s_lshl_b32", sSrcBit, 1, sT0),
            sop("s_lshl_b32", sT1, sJ, 3), sop("s_add_u32", sT0, sT0, sT1),
            sop("s_mul_i32", sSrcOff, sT0, 24576), sop("s_add_u32", sSrcOff2, sSrcOff, 4096)]


def part_loads():
    if E("NOLD"):
        return []
    return [bload(LD.sub(4 * f, 4), vPst, sWS, sSrcOff if f < 4 else sSrcOff2, off=(f % 4) * 1024,
                  flags=os.environ.get("PLF", "sc1").replace("_", " ").strip())
            for f in range(6)]


def part_acc(dst):
    o = []
    if E("NOACC"):
        return o
    SelLo, SelHi = SEL.sub(2, 4), SEL.sub(0, 4)
    for f in range(6):
        a_, qt = f // 3, f % 3
        for h, sel in ((0, SelLo), (1, SelHi)):
            D = dst.sub(((2 * a_ + h) * 3 + qt) * 4, 4)
            o.append(mfma(D, sel, LD.sub(4 * f, 4), D))
    return o


def pack_ops():
    ops = []
    for nt in range(4):
        for qt in range(3):
            src = ACC.sub((nt * 3 + qt) * 4, 4)
            d = PK.sub(((nt >> 1) * 3 + qt) * 4, 4)
            ops.append(vop("v_cvt_pk_bf16_f32", d[2 * (nt & 1)], src[0], src[1]))
            ops.append(vop("v_cvt_pk_bf16_f32", d[2 * (nt & 1) + 1], src[2], src[3]))
    return ops


def wo_units(q):
    return [unit_wo(tl, ks2, nt, q) for tl in range(2) for ks2 in range(2) for nt in range(4)]


def flag_addr(first_dummy):
    o = [sop("s_add_u32", sT0, sNext, 7), sop("s_and_b32", sT0, sT0, 7)]
    if first_dummy:
        o += [scmp("s_cmp_eq_u32", sPos, 1), sop("s_cselect_b32", sT0, sJ, sT0)]
    o += [sop("s_lshl_b32", sT0, sT0, 2), sop("s_add_u32", sT0, sT0, sW), sop("s_lshl_b32", sT0, sT0, 7),
          sop("s_add_u32", sFlagDst, sT0, sFlagBase)]
    return o


PROF2 = E("PROF2")


def acc_time(idx, inner):
    if not PROF2:
        return inner
    r = s(8 + idx - 14)
    return ([raw("s_memtime s[48:49]", wr=[s(48, 2)]), wait_lg0(), sop("s_mov_b32", s(15), s(48))] + inner +
            [raw("s_memtime s[48:49]", wr=[s(48, 2)]), wait_lg0(), sop("s_sub_u32", s(48), s(48), s(15)),
             sop("s_add_u32", r, r, s(48))])


def wo_loop(fastv, tail_in):
    sfx = "F" if fastv else "S"
    fl = os.environ.get("STF", "_").replace("_", " ").strip() if fastv else os.environ.get("STS", "sc1").replace("_", " ").strip()
    tail = clone_tail(tail_in)
    body = [label("L_WO" + sfx)]
    skip = {}

    def only(ins_list, pred):
        for i in ins_list:
            skip[id(i)] = pred
        return ins_list

    LOADS = lambda pos: pos >= 3 and pos != 5
    ACCU = lambda pos: LOADS(pos - 1)
    sts = []
    for k in range(6):
        st = bstore(PK.sub(k * 4, 4), vPst, sWS, (sDiag if E("STHOT") else sPrev) if k < 4 else sPrev2, off=(k % 4) * 1024, flags=fl)
        st.stage = (5 if k < 4 else 4) - E("FEARLY", 0)
        if E("NOTAG"):
            st.stage = None
        sts.append((acc_time(18, [st]) if not E("PROF3") else [st]) if not NOST else [nop(0)])
    FQ = 1 - E("FEARLY", 0)
    for q in range(4):
        units = wo_units(q)
        ntail = sum(len(u.mfmas) for u in tail)
        c = (WD + q) % 8
        groups = dma_wo(sBaseM if q < 3 else sBaseP, RB + c * 16384, WD)
        if E("PROF3"):
            groups = [acc_time(20, g_) for g_ in groups]
        fill, post, opening = [], [], (acc_time(14 + q, OPEN()) if not E("PROF3") else OPEN())
        flagst = flag_addr(True) + [bstore(vStamp, vZero, sWS, sFlagDst, flags="" if fastv else "sc1")]
        if q == 0:
            fill = [(op, ntail) for op in pack_ops()]
            sp = [(2, flag_dma(2)), (5, groups[0]), (9, groups[1]), (14, groups[2]), (19, groups[3]),
                  (26, sts[0]), (32, sts[1]), (38, sts[2]), (44, sts[3])]
            if FQ == 0:
                sp = [(1, flagst)] + sp
        elif q == 1:
            sp = [(6, sts[4]), (12, sts[5]), (18, groups[0]), (24, groups[1]), (30, groups[2]), (36, groups[3])]
            if FQ == 1:
                sp = [(2, flagst)] + sp
        elif q == 2:
            sp = spread(groups, 48, 3)
            acc = part_reads() + [lslot()] + part_acc(SUM) + [sop("s_add_u32", sKn, sKn, 1)]
            blk = [flag_read(), scmp("s_cmp_lg_u32", sDo, 0), branch("s_cbranch_scc0", "L_noacc" + sfx)]
            blk += only(acc, lambda pos: ACCU(pos)) + [label("L_noacc" + sfx)]
            blk += src_setup(sKn) + flag_eval()
            blk += [sop("s_cselect_b32", sDo, 1, 0), scmp("s_cmp_le_u32", sKn, 7),
                    sop("s_cselect_b32", sDo, sDo, 0), scmp("s_cmp_lg_u32", sDo, 0),
                    sop("s_cselect_b32", sSrcOff, sSrcOff, sDiag)]
            pls = part_dma([4, 4, 4, 4, 3, 3])
            if E("NOLD"):
                pls = [[nop(0)]] * 6
            sp = [(2, groups[0]), (7, pls[0]), (12, groups[1]), (17, pls[1]), (22, groups[2]),
                  (27, pls[2]), (32, groups[3]), (38, pls[3])]
            G.pl_rest = pls[4:]
            opening = opening + acc_time(19, blk)
        else:
            sp = [(2, groups[0]), (7, G.pl_rest[0]), (12, groups[1]), (17, G.pl_rest[1]), (22, groups[2]),
                  (32, groups[3])]
        post += adv_wo()
        if q == 3:
            post += [sop("s_xor_b32", sTog, sTog, 65536), sop("s_sub_u32", sBaseM, sW2K, sTog),
                     sop("s_add_u32", sBaseP, sW2K, sTog)]
            post += adv_read_pair([vWoE, vWoO])
            post += [sop("s_add_u32", sNext, sNext, 1), sop("s_and_b32", sNext, sNext, 7),
                     sop("s_lshl_b32", sT0, sNext, 3), sop("s_add_u32", sT0, sT0, sJ),
                     sop("s_mul_i32", sPrev, sT0, 24576), sop("s_add_u32", sPrev2, sPrev, 4096),
                     sop("s_add_u32", sPos, sPos, 1)]
        code, tail = schedule(tail, units, LAG, fill, sp, opening, post=post)
        body += code
    body += [scmp("s_cmp_le_u32", sPos, 8), branch("s_cbranch_scc1", "L_WO" + sfx)]
    tr = []
    for pos in range(1, 9):
        tr += [i for i in body if skip.get(id(i), lambda p: True)(pos)]
    return body, tr, tail


def outproj():
    fr0 = G.fr
    dummy = wo_units(3)[-LAG:]
    G.fr = fr0
    z = []
    if PROF2:
        for i_ in range(7):
            z.append(sop("s_mov_b32", s(8 + i_), 0))
    put("wo_pre", wo_read_setup() + z + [scmp("s_cmp_lg_u32", sSame, 0), branch("s_cbranch_scc0", "L_WOS")])
    bF, trF, tail = wo_loop(True, dummy)
    G.fr = fr0
    bS, trS, _ = wo_loop(False, dummy)
    add_block("WOF", bF + [branch("s_branch", "L_WOend")])
    add_block("WOS", bS + [label("L_WOend")])
    G.alt = (len(trace), trS)
    trace.extend(trF)
    G.alt_end = len(trace)
    fin = stamp("WOdone") + [lslot()] + [m for u in clone_tail(tail) for m in u.mfmas]
    fin += [wait_vm0()] + flag_addr(False)
    fin += [scmp("s_cmp_lg_u32", sSame, 0), branch("s_cbranch_scc0", "L_lfS"),
            cond(bstore(vStamp, vZero, sWS, sFlagDst)), branch("s_branch", "L_lfJ"), label("L_lfS"),
            cond(bstore(vStamp, vZero, sWS, sFlagDst, flags="sc1")), label("L_lfJ")]
    acc = part_reads() + [wait_lg0()] + part_acc(SUM) + [sop("s_add_u32", sKn, sKn, 1)]
    fin += [scmp("s_cmp_lg_u32", sDo, 0), branch("s_cbranch_scc0", "L_noacc2")] + acc + [label("L_noacc2")]
    fin += [scmp("s_cmp_gt_u32", sKn, 7), branch("s_cbranch_scc1", "L_remdone")]
    put("final0", fin)
    loop = [label("L_rem")] + src_setup(sKn) + [sop("s_mov_b32", sCnt, 0x200000), label("L_spin"),
                                                 flag_load(), wait_vm0()]
    loop += flag_eval() + [branch("s_cbranch_scc1", "L_got"), raw("s_sleep 1"),
                           sop("s_sub_u32", sCnt, sCnt, 1), scmp("s_cmp_lg_u32", sCnt, 0),
                           branch("s_cbranch_scc1", "L_spin"), label("L_got")]
    loop += part_loads() + [wait_vm0()] + part_acc(SUM) + [sop("s_add_u32", sKn, sKn, 1),
                                                           scmp("s_cmp_le_u32", sKn, 7),
                                                           branch("s_cbranch_scc1", "L_rem")]
    add_block("rem", loop)
    trace.extend(loop * 2)
    rest = [label("L_remdone")] + stamp("gathered")
    t0, t1, vo = vT[8], vT[9], vT[10]
    rest += [vop("v_lshrrev_b32", t0, 6, vTid), vop("v_mul_u32_u24", t0, 48, t0), vop("v_and_b32", t1, 15, vLane),
             vop("v_add_u32", t0, t0, t1), vop("v_lshlrev_b32", vo, 11, t0),
             vop("v_lshrrev_b32", t0, 4, vLane), vop("v_lshl_add_u32", vo, t0, 3, vo),
             sop("s_lshl_b32", sT0, sJ, 7), sop("s_mov_b32", sT1, 16 * 2048), sop("s_mov_b32", sT2, 32 * 2048),
             sop("s_add_u32", sT1, sT1, sT0), sop("s_add_u32", sT2, sT2, sT0)]
    for nt in range(4):
        for qt in range(3):
            src = ACC.sub((nt * 3 + qt) * 4, 4)
            sm_ = SUM.sub((nt * 3 + qt) * 4, 4)
            d = LD.sub((nt * 3 + qt) * 2, 2)
            for r in range(4):
                rest.append(vop("v_add_f32", sm_[r], src[r], sm_[r]))
            rest.append(vop("v_cvt_pk_bf16_f32", d[0], sm_[0], sm_[1]))
            rest.append(vop("v_cvt_pk_bf16_f32", d[1], sm_[2], sm_[3]))
            rest.append(bstore(d, vo, sOut, [sT0, sT1, sT2][qt], off=nt * 32))
    rest += [wait_vm0()] + stamp("end") + stamp_dump()
    put("final", rest)


def main():
    put("pro", prologue())
    q0_phase()
    attention()
    if STOP == "":
        outproj()
        put("fin", finish())
    traces = [trace]
    if hasattr(G, "alt"):
        n0, trS = G.alt
        traces.append(trace[:n0] + trS + trace[G.alt_end:])
    for tr in traces:
        resolve_waits(tr, T0=-1)
    for tr in traces:
        resolve_hazards(tr)
    static = []
    for nm in layout:
        static.append(comment(f"---- block {nm}"))
        static += blocks[nm]
    lines = emit(static)
    hdr = open(f"cdna_kernels/{NAME}.s.ref").read().split("; Override launch geometry")[0]
    out = [hdr.rstrip("\n"),
           f"; @launch grid=(256,1,1) block=(256,1,1) lds={LDS_BYTES}",
           '.amdgcn_target "amdgcn-amd-amdhsa--gfx950"', ".text", f".globl {NAME}_kernel", ".p2align 8",
           f".type {NAME}_kernel,@function", f"{NAME}_kernel:"]
    out += lines
    out += ['.section .rodata,"a"', ".p2align 6", f".amdhsa_kernel {NAME}_kernel",
            "  .amdhsa_next_free_vgpr 512", "  .amdhsa_next_free_sgpr 102", "  .amdhsa_accum_offset 256",
            "  .amdhsa_group_segment_fixed_size 0", "  .amdhsa_kernarg_size 104", "  .amdhsa_user_sgpr_count 2",
            "  .amdhsa_user_sgpr_kernarg_segment_ptr 1", "  .amdhsa_system_sgpr_workgroup_id_x 1",
            "  .amdhsa_float_denorm_mode_32 3", "  .amdhsa_float_denorm_mode_16_64 3",
            ".end_amdhsa_kernel"]
    open(OUTF, "w").write("\n".join(out) + "\n")
    nins = sum(1 for l in lines if l.startswith("    "))
    print(f"wrote {OUTF}: {nins} instructions", file=sys.stderr)
    if PROF:
        open(OUTF + ".stamps", "w").write("\n".join(STAMPS))


main()
```

```python
from fw import *


import os
SOFT_POST = True
RL_DEFAULT = int(os.environ.get('RL', '9'))


class Unit:
    def __init__(self, reads, mfmas, name=""):
        self.reads, self.mfmas, self.name = reads, mfmas, name


def cost(ins):
    if ins.kind == "trans":
        return 2
    if ins.kind in ("valu", "perm", "rfl"):
        return 1
    return 0


def schedule(tail, units, L, fillers, specials=(), opening=(), RL=None, tail_fill_start=0, flush_end=True,
             extra_reads=(), heavy=None, post=(), light=False, pre_reads=(), sp_in_ds=False, seq_reads=None, open_slot=True):
    if RL is None:
        RL = RL_DEFAULT
    nun = len(units) - L
    spine = [m for u in tail for m in u.mfmas] + [m for u in units[:nun] for m in u.mfmas]
    n = len(spine)
    new_tail = units[nun:]
    ntail = sum(len(u.mfmas) for u in tail)
    rd_gap = {}
    pre = []
    pos = ntail
    if ntail == 0:
        pre = list(opening)
        opening = ()
    first_free = 1 if opening else 0
    nextg = first_free
    if ntail == 0:
        pre.extend(pre_reads)
        pre_reads = ()
    pr = list(pre_reads)
    if seq_reads is not None:
        for i_, r_ in enumerate(seq_reads):
            rd_gap[first_free + i_] = [r_]
        assert first_free + len(seq_reads) <= n
        pr = []
    for u in (units if seq_reads is None else []):
        g = max(pos - RL, nextg)
        if ntail == 0 and pos < RL:
            pre.extend(u.reads)
        else:
            for r in u.reads:
                g = max(g, nextg)
                assert g < n and g < pos, ("read does not fit", u.name, g, n, pos)
                rd_gap.setdefault(g, []).append(r)
                nextg = g + 1
                g += 1
            if pr:
                rd_gap.setdefault(nextg, []).append(pr.pop(0))
                nextg += 1
        pos += len(u.mfmas)
    assert not pr
    F = [f for f in fillers]
    nf = len(F)
    pred_m = [-1] * nf
    succ_m = [n] * nf
    pred_f = [[] for _ in range(nf)]
    for i, (ins, rp) in enumerate(F):
        for j, m in enumerate(spine):
            conflict = (m.wr & (ins.rd | ins.wr)) or (m.rd & ins.wr)
            if not conflict:
                continue
            if j < rp:
                pred_m[i] = max(pred_m[i], j)
            else:
                succ_m[i] = min(succ_m[i], j)
        for k in range(i):
            o = F[k][0]
            if (o.wr & (ins.rd | ins.wr)) or (o.rd & ins.wr):
                pred_f[i].append(k)
    for i in range(nf - 1, -1, -1):
        for k in pred_f[i]:
            succ_m[k] = min(succ_m[k], succ_m[i])
    raw_m = [-1] * nf
    for i, (ins, rp) in enumerate(F):
        for j in range(min(rp, n)):
            if spine[j].wr & (ins.rd | ins.wr):
                raw_m[i] = j
    total = sum(cost(f[0]) for f in F)
    done = [False] * nf
    emitted_gap = [None] * nf
    out = list(pre)
    if pre:
        out.append(lslot())
    sp = list(specials)
    cum = 0

    def ready(i, g):
        if done[i]:
            return False
        if pred_m[i] > g:
            return False
        if raw_m[i] >= 0 and g - raw_m[i] < 3:
            return False
        for k in pred_f[i]:
            if not done[k]:
                return False
            if F[k][0].kind == "trans" and emitted_gap[k] == g and (F[k][0].wr & F[i][0].rd):
                return False
        return True

    def emit_f(i, g):
        nonlocal cum
        out.append(F[i][0])
        done[i] = True
        emitted_gap[i] = g
        cum += cost(F[i][0])

    def flush_before(g):
        for i in range(nf):
            if not done[i] and succ_m[i] <= g:
                stack = [i]
                order = []
                seen = set()

                def visit(x):
                    if x in seen or done[x]:
                        return
                    seen.add(x)
                    for k in pred_f[x]:
                        visit(k)
                    order.append(x)
                visit(i)
                for x in order:
                    assert pred_m[x] < g, ("impossible filler order", F[x][0].text, pred_m[x], g)
                    emit_f(x, g - 1)

    def pick(g, allow_trans, allow_v):
        for i in range(nf):
            if done[i]:
                continue
            k = F[i][0].kind
            if k == "trans" and not allow_trans:
                continue
            if k != "trans" and not allow_v:
                continue
            if ready(i, g):
                return i
        return None

    sp_gap = {}
    tmp = list(specials)
    for g in range(n):
        if (g == 0 and opening) or (g in rd_gap and not sp_in_ds):
            continue
        if tmp and tmp[0][0] <= g:
            sp_gap[g] = tmp.pop(0)[1]
    sp = tmp
    postq = []
    if SOFT_POST:
        for op in post:
            e_ = -1
            for g_, grp in sp_gap.items():
                for x in grp:
                    if (x.rd | x.wr) & op.wr or (x.wr & op.rd):
                        e_ = max(e_, g_)
            for g_, rds in rd_gap.items():
                for x in rds:
                    if (x.rd | x.wr) & op.wr or (x.wr & op.rd):
                        e_ = max(e_, g_)
            for x in sp:
                e_ = n
            if opening:
                for x in opening:
                    if (x.rd | x.wr) & op.wr or (x.wr & op.rd):
                        e_ = max(e_, 0)
            postq.append([op, e_])
        m_ = -1
        for it in postq:
            m_ = max(m_, it[1]); it[1] = m_
        post = []

    def soft(g, maxn=1):
        k = 0
        while postq and k < maxn and postq[0][1] < g:
            out.append(postq.pop(0)[0]); k += 1
        return k
    free = [g for g in range(n) if not ((g == 0 and opening) or g in rd_gap or g in sp_gap)]
    ntrans = sum(1 for f in F if f[0].kind == "trans")
    extra = max(0, ntrans - len(free))
    dsg = sorted(rd_gap.keys())
    te = set()
    if extra and heavy is None and light:
        cand = [g for g in dsg if g >= 6]
        for k in range(extra):
            te.add(cand[((2 * k + 1) * len(cand)) // (2 * extra)])
    for g in range(n):
        flush_before(g)
        out.append(spine[g])
        target = total * (g + 1) / max(n - tail_fill_start, 1) if heavy is None else heavy(g, n, total)
        if g == 0 and opening:
            out.extend(opening)
            if open_slot:
                out.append(lslot())
            continue
        if g in rd_gap:
            rds = rd_gap[g]
            out.append(rds[0])
            assert len(rds) == 1
            if g in sp_gap:
                out.extend(sp_gap[g])
                continue
            i = None
            if g in te:
                i = pick(g, True, False)
            if i is None:
                i = pick(g, False, True)
            if i is not None:
                emit_f(i, g)
            else:
                soft(g, 1)
            if not light:
                while cum + 0.5 < target - 1.5:
                    i = pick(g, False, True)
                    if i is None:
                        break
                    emit_f(i, g)
            continue
        if g in sp_gap:
            grp = list(sp_gap[g])
            if not open_slot:
                out.extend(grp)
            elif grp[-1].kind == "dma":
                out.extend(grp[:-1]); out.append(lslot()); out.append(grp[-1])
            else:
                out.append(lslot()); out.extend(grp)
            continue
        left = n - 1 - g
        pend = sum(1 for it in postq if it[1] < g)
        soft(g, 1 if pend <= left else 2)
        if open_slot:
            out.append(lslot())
        i = pick(g, True, False)
        if i is not None:
            emit_f(i, g)
        else:
            for _ in range(2):
                i = pick(g, False, True)
                if i is not None:
                    emit_f(i, g)
        if not light:
            while cum + 0.5 < target - 1.5:
                i = pick(g, True, True)
                if i is None:
                    break
                emit_f(i, g)
    for item in sp:
        out.extend(item[1])
    if flush_end:
        for i in range(nf):
            if not done[i]:
                stack = []

                def visit2(x):
                    if done[x]:
                        return
                    for k in pred_f[x]:
                        visit2(k)
                    emit_f(x, n)
                visit2(i)
    out.extend(it[0] for it in postq)
    out.extend(post)
    return out, new_tail
```

```python
import sys, os, copy, struct, math
sys.path.insert(0, os.path.dirname(os.path.abspath(__file__)))
from fw import *
from sched import *

NAME = "concat_heads__mha_block_cached__mha_block_cached__near_ridge"
STOP = os.environ.get("STOP", "")
OUTF = sys.argv[1] if len(sys.argv) > 1 else f"cdna_kernels/{NAME}.s"
E = lambda k, d=0: int(os.environ.get(k, d))
PROF = E("PROF")
LAG = E("LAG", 3)
MAPX = E("MAPX", 1)
os.environ.setdefault("WQ_NT", "1"); os.environ.setdefault("WO_NT", "1")
WQ_NT, WO_NT, NOX, NOWQ, NOKV, NOST = (E(k) for k in ("WQ_NT", "WO_NT", "NOX", "NOWQ", "NOKV", "NOST"))

VOFF = 8448
WOFF = 16896
XOFF = 25120
STG = 37408
NST = 4
LDS_BYTES = 163840
FLAGOFF = 1572864
PAIRWS = FLAGOFF + 8192
MAGIC = 0x5bd1e995
MAGICF = 0x2c1b3c6d

sX, sK, sV, sWq, sWo, sWS, sOut, sDbg = [s(8 + 4 * i, 4) for i in range(8)]
sW = s(40)
sJ = s(41)
sPair = s(42)
sKV = s(43)
sXo = s(44)
sWqo = s(45)
sStE = s(46)
sStO = s(47)
sCK = [s(74), s(75), s(76), s(77)]
sCW = [s(78), s(79)]
sCX = [s(80), s(81), s(82)]
sDelta = s(83)
sT0, sT1, sT2, sT3 = s(84), s(85), s(86), s(87)
sC = s(88, 2)
sCnt = s(90)
sHead = s(91)
sDump = s(92, 4)
sPrev = s(96)
sNext = s(97)
sXcc = s(98)
sSame = s(99)
sStart = s(100, 2)
sWoT = s(43)
sWoS = s(44)
sCO = [s(74), s(75), s(76), s(77)]

vTid = v(0)
vK, vV, vWq, vXr = v(1), v(2), v(3), v(4)
vKVd, vWqd, vWqd2 = v(5), v(6), v(7)
vXd = [v(8), v(9), v(10)]
vL = [v(11), v(12), v(13)]
vLane = v(14)
S = [v(16, 24), v(40, 24)]
P = [v(64, 12), v(76, 12)]
Qc = v(88, 48)
Oacc = v(136, 96)
vT = v(232, 16)
vRL = [v(248, 2), v(250, 2), v(252, 2)]
vT2 = v(254, 2)
vWoE, vWoO, vPst, vWod, vWod2 = v(1), v(2), v(3), v(6), v(7)
ACC = v(136, 48)
PK = v(184, 24)

Qacc = a(0, 96)
O0 = a(96, 48)
O1 = a(144, 48)
XS = [a(192, 12), a(204, 12)]
FR = [a(216 + 4 * i, 4) for i in range(8)]
OSLOT = [O0, O1, Qacc.sub(0, 48), Qacc.sub(48, 48)]


def St(b, kt, qt): return S[b].sub((kt * 3 + qt) * 4, 4)
def Pt(b, qt): return P[b].sub(qt * 4, 4)
def Qct(ks, qt): return Qc.sub((ks * 3 + qt) * 4, 4)
def tile(base, dt, qt): return base.sub((dt * 3 + qt) * 4, 4)


class G:
    fr = 0


def nextfrag():
    f = FR[G.fr % 8]
    G.fr += 1
    return f


def unit_qp(dt, par, xs, first):
    f = nextfrag()
    off = par * STG + (dt >> 1) * 256 + (dt & 1) * 8
    reads = [ds_tr(f.sub(0, 2), vWq, off), ds_tr(f.sub(2, 2), vWq, off + 1024)]
    ms = []
    for qt in range(3):
        D = tile(Qacc, dt, qt)
        ms.append(mfma(D, f, XS[xs].sub(qt * 4, 4), 0 if first else D))
    return Unit(reads, ms, f"QP{dt}")


def x_reads(par, xs):
    return [ds_b128(XS[xs].sub(qt * 4, 4), vXr, par * STG + qt * 1024) for qt in range(3)]


def unit_qk(kt, ks, par, sb, base=None, extra=0):
    f = nextfrag()
    off = par * STG + kt * 4224 + ks * 256 + extra
    reads = [ds_b128(f, base or vK, off)]
    ms = []
    for qt in range(3):
        D = St(sb, kt, qt)
        ms.append(mfma(D, f, Qct(ks, qt), 0 if ks == 0 else D))
    return Unit(reads, ms, f"QK{kt}{ks}")


def unit_pv(dt, par, pb, first=False):
    f = nextfrag()
    off = par * STG + (dt >> 1) * 256 + (dt & 1) * 32
    reads = [ds_tr(f.sub(0, 2), vV, off), ds_tr(f.sub(2, 2), vV, off + 4224)]
    ms = []
    for qt in range(3):
        D = tile(Oacc, dt, qt)
        ms.append(mfma(D, f, Pt(pb, qt), 0 if first else D))
    return Unit(reads, ms, f"PV{dt}")


def softmax_ops(sb, pb, first=False):
    tiles = []
    for kt in range(2):
        for qt in range(3):
            t = St(sb, kt, qt)
            ex = [vop("v_exp_f32", t[r], t[r]) for r in range(4)]
            rest = []
            for r in range(4):
                if first and kt == 0 and r == 0:
                    rest.append(vop("v_mov_b32", vL[qt], t[r]))
                else:
                    rest.append(vop("v_add_f32", vL[qt], t[r], vL[qt]))
            p = Pt(pb, qt)
            rest.insert(2, vop("v_cvt_pk_bf16_f32", p[2 * kt], t[0], t[1]))
            rest.append(vop("v_cvt_pk_bf16_f32", p[2 * kt + 1], t[2], t[3]))
            tiles.append((ex, rest))
    out = list(tiles[0][0])
    for i in range(6):
        nxt = tiles[i + 1][0] if i + 1 < 6 else []
        rest = tiles[i][1]
        k = 0
        for j in range(4):
            if j < len(nxt):
                out.append(nxt[j])
            out.append(rest[k]); k += 1
            if j >= 2:
                out.append(rest[k]); k += 1
    return out


def qconv_ops():
    ops = []
    n = 0
    for ks in range(4):
        for qt in range(3):
            for h in range(2):
                src = tile(Qacc, 2 * ks + h, qt)
                t = vT.sub((n % 4) * 4, 4)
                n += 1
                for r in range(4):
                    ops.append(vop("v_accvgpr_read_b32", t[r], src[r]))
                ops.append(vop("v_pk_mul_f32", t.sub(0, 2), t.sub(0, 2), sC))
                ops.append(vop("v_pk_mul_f32", t.sub(2, 2), t.sub(2, 2), sC))
                d = Qct(ks, qt)
                ops.append(vop("v_cvt_pk_bf16_f32", d[2 * h], t[0], t[1]))
                ops.append(vop("v_cvt_pk_bf16_f32", d[2 * h + 1], t[2], t[3]))
    return ops


def lreduce_ops():
    ops = []
    for qt in range(3):
        t = vT[12 + qt]
        l = vL[qt]
        ops.append(vop("v_mov_b32", t, l))
        ops.append(vop("v_permlane16_swap_b32", l, t))
        ops.append(vop("v_add_f32", l, l, t))
        ops.append(vop("v_mov_b32", t, l))
        ops.append(vop("v_permlane32_swap_b32", l, t))
        ops.append(vop("v_add_f32", l, l, t))
        ops.append(vop("v_rcp_f32", vRL[qt][0], l))
    return ops


def oepi_ops(dst, shift):
    ops = []
    sh = []
    if shift:
        for k in range(48):
            sh.append(vop("v_accvgpr_mov_b32", O0[k], O1[k]))
    n = 0
    for ks in range(4):
        for h in range(2):
            for qt in range(3):
                src = tile(Oacc, 2 * ks + h, qt)
                t = vT.sub((n % 2) * 6, 4)
                u = vT.sub((n % 2) * 6 + 4, 2)
                n += 1
                ops.append(vop("v_pk_mul_f32", t.sub(0, 2), src.sub(0, 2), vRL[qt], mods="op_sel_hi:[1,0]"))
                ops.append(vop("v_pk_mul_f32", t.sub(2, 2), src.sub(2, 2), vRL[qt], mods="op_sel_hi:[1,0]"))
                ops.append(vop("v_cvt_pk_bf16_f32", u[0], t[0], t[1]))
                ops.append(vop("v_cvt_pk_bf16_f32", u[1], t[2], t[3]))
                d = dst.sub((ks * 3 + qt) * 4, 4)
                ops.append(vop("v_accvgpr_write_b32", d[2 * h], u[0]))
                ops.append(vop("v_accvgpr_write_b32", d[2 * h + 1], u[1]))
    return sh + ops


def m0(stage_reg, const):
    return sop("s_add_u32", "m0", stage_reg, const)


def stw(par):
    return sStE if par == 0 else sStO


def dma_k(par, rel=3):
    return [[m0(stw(par), sCK[0]), dma(vKVd, sK, sKV, 0, nt=True, stage=rel)],
            [m0(stw(par), sCK[1]), dma(vKVd, sK, sKV, 1024, nt=True, stage=rel)]]


def dma_v(par, rel=3):
    return [[m0(stw(par), sCK[2]), dma(vKVd, sV, sKV, 0, nt=True, stage=rel)],
            [m0(stw(par), sCK[3]), dma(vKVd, sV, sKV, 1024, nt=True, stage=rel)]]


def dma_wq(par, rel=3):
    if NOWQ:
        return []
    return [[m0(stw(par), sCW[0]), dma(vWqd, sWq, sWqo, 0, nt=WQ_NT, stage=rel)],
            [m0(stw(par), sCW[1]), dma(vWqd2, sWq, sWqo, 0, nt=WQ_NT, stage=rel)]]


def dma_x(par, rel=3, consts=None):
    if NOX:
        return []
    c = consts or sCX
    return [[m0(stw(par), c[qt]), dma(vXd[qt], sX, sXo, 0, stage=rel)] for qt in range(3)]


XE = (3 * STG) ^ (1 * STG)
XO = (0 * STG) ^ (2 * STG)


def toggle_write(par):
    return [sop("s_xor_b32", stw(par), stw(par), XE if par == 0 else XO)]


def adv_kv(): return [sop("s_add_u32", sKV, sKV, 0 if E("KVHOT") else 8192)]
def adv_x(): return [sop("s_add_u32", sXo, sXo, 0 if E("XHOT") else 64), sop("s_and_b32", sXo, sXo, 1023)]


def adv_wq():
    return [sop("s_add_u32", sWqo, sWqo, 0 if E("WQHOT") else 32 * 8192),
            scmp("s_cmp_ge_u32", sWqo, 0x400000),
            sop("s_cselect_b32", sT0, 0x400000 - 256, 0),
            sop("s_sub_u32", sWqo, sWqo, sT0)]


def adv_read_pair(regs):
    val = [vop("v_add_u32", r, sDelta, r) for r in regs]
    sal = [sop("s_sub_u32", sDelta, 0, sDelta)]
    return val + sal


blocks = {}
layout = []
trace = []


def add_block(name, ins):
    blocks[name] = ins
    layout.append(name)


def put(name, code):
    add_block(name, code)
    trace.extend(code)


NSTAMP = [0]
STAMPS = []


def stamp(name):
    if not PROF:
        return []
    i = NSTAMP[0]
    NSTAMP[0] += 1
    STAMPS.append(name)
    assert i < 20
    return [raw("s_memtime s[48:49]", wr=[s(48, 2)]), wait_lg0(), sop("s_mov_b32", s(50 + i), s(48))]


def stamp_dump():
    if not PROF:
        return []
    o = [sop("s_lshl_b32", sT0, s(2), 2), sop("s_add_u32", sT0, sT0, sW), sop("s_lshl_b32", sT0, sT0, 8),
         vop("v_mov_b32", vT2[0], 0)]
    for i in range(NSTAMP[0]):
        o.append(vop("v_mov_b32", vT2[1], s(50 + i)))
        o.append(bstore(vT2[1], vT2[0], sDump, sT0, off=4 * i))
    o += [raw("s_memrealtime s[48:49]", wr=[s(48, 2)]), wait_lg0(), sop("s_sub_u32", s(48), s(48), sStart[0]),
          sop("s_add_u32", s(48), s(48), 2000),
          vop("v_mov_b32", vT2[1], s(48)), bstore(vT2[1], vT2[0], sDump, sT0, off=4 * 40),
          vop("v_mov_b32", vT2[1], sStart[0]), bstore(vT2[1], vT2[0], sDump, sT0, off=4 * 41)]
    if E("PROF2") or E("PROF4"):
        for i in range(7):
            o.append(vop("v_mov_b32", vT2[1], s(8 + i)))
            o.append(bstore(vT2[1], vT2[0], sDump, sT0, off=4 * (24 + i)))
    return o


def OPEN():
    return [interval(), vslot(), publish(0), barrier()]


def clone_tail(tail):
    return [Unit([], [copy.copy(m) for m in u.mfmas], u.name) for u in tail]


def loop_ctl(lbl):
    return [sop("s_sub_u32", sCnt, sCnt, 1), scmp("s_cmp_lg_u32", sCnt, 0), branch("s_cbranch_scc1", lbl)]


def dump(regs, base_idx=0):
    o = [sop("s_lshl_b32", sT0, s(2), 2), sop("s_add_u32", sT0, sT0, sW), sop("s_lshl_b32", sT0, sT0, 16),
         vop("v_lshlrev_b32", vT2[0], 2, vLane), nop(7), nop(7)]
    idx = base_idx
    for rr in regs:
        for k in range(rr.n):
            o.append(sop("s_add_u32", sT1, sT0, idx * 256))
            o.append(bstore(rr[k], vT2[0], sDump, sT1))
            idx += 1
    o.append(wait_all())
    return o


def finish():
    return [wait_all(), raw("s_endpgm")]


def prologue():
    o = []
    e = o.append
    e(raw("s_cmp_lt_u32 s2, 0x100", "salu", wr=["scc"]))
    e(branch("s_cbranch_scc1", "L_start"))
    e(raw("s_endpgm"))
    e(label("L_start"))
    e(raw("s_load_dwordx16 s[48:63], s[0:1], 0", wr=[s(48, 16)]))
    e(raw("s_load_dwordx4 s[64:67], s[0:1], 64", wr=[s(64, 4)]))
    e(raw("s_load_dwordx4 s[68:71], s[0:1], 80", wr=[s(68, 4)]))
    e(raw("s_load_dwordx2 s[72:73], s[0:1], 96", wr=[s(72, 2)]))
    w = vT[0]
    e(vop("v_lshrrev_b32", w, 6, vTid))
    e(vop("v_and_b32", vLane, 63, vTid))
    e(vop("v_readfirstlane_b32", sW, w))
    e(sop("s_and_b32", sT0, s(2), 7))
    e(sop("s_lshr_b32", sT1, s(2), 3))
    e(sop("s_lshr_b32", sT2, sT0, 2))
    if MAPX:
        e(sop("s_and_b32", sT3, sT0, 3))
        e(sop("s_lshl_b32", sT3, sT3, 2))
        e(sop("s_lshr_b32", sPair, sT1, 3))
        e(sop("s_add_u32", sT3, sT3, sPair))
        e(sop("s_and_b32", sJ, sT1, 7))
    else:
        e(sop("s_bfe_u32", sT3, sT0, 0x10001))
        e(sop("s_lshl_b32", sT3, sT3, 3))
        e(sop("s_and_b32", sPair, sT1, 7))
        e(sop("s_add_u32", sT3, sT3, sPair))
        e(sop("s_and_b32", sJ, sT0, 1))
        e(sop("s_lshl_b32", sJ, sJ, 2))
        e(sop("s_lshr_b32", sT1, sT1, 3))
        e(sop("s_add_u32", sJ, sJ, sT1))
    e(sop("s_lshl_b32", sPair, sT2, 4))
    e(sop("s_add_u32", sPair, sPair, sT3))
    e(raw("s_getreg_b32 s98, hwreg(20, 0, 4)", "salu", wr=[sXcc]))
    e(raw("s_memrealtime s[100:101]", wr=[sStart]))
    i16, g, r4, c4, t0, t1 = vT[1], vT[2], vT[3], vT[4], vT[5], vT[6]
    e(vop("v_and_b32", i16, 15, vLane))
    e(vop("v_lshrrev_b32", g, 4, vLane))
    e(vop("v_bfe_u32", r4, vLane, 2, 2))
    e(vop("v_and_b32", c4, 3, vLane))
    e(sop("s_movk_i32", sT0, 1056))
    e(vop("v_mul_lo_u32", vK, r4, sT0))
    e(vop("v_lshl_add_u32", vK, c4, 6, vK))
    e(vop("v_lshl_add_u32", vK, g, 4, vK))
    e(vop("v_mul_lo_u32", vV, g, sT0))
    e(vop("v_lshl_add_u32", vV, r4, 6, vV))
    e(vop("v_lshl_add_u32", vV, c4, 3, vV))
    e(vop("v_add_u32", vV, VOFF, vV))
    e(vop("v_lshlrev_b32", vWq, 11, g))
    e(vop("v_and_b32", t0, 1, g))
    e(vop("v_lshl_add_u32", vWq, t0, 3, vWq))
    e(vop("v_lshrrev_b32", t0, 1, g))
    e(vop("v_lshl_add_u32", vWq, t0, 4, vWq))
    e(vop("v_lshl_add_u32", vWq, r4, 6, vWq))
    e(vop("v_lshl_add_u32", vWq, c4, 4, vWq))
    e(vop("v_add_u32", vWq, WOFF, vWq))
    e(vop("v_sub_u32", t0, 0, r4))
    e(vop("v_and_b32", t0, 3, t0))
    e(vop("v_xor_b32", t0, t0, g))
    e(vop("v_mul_u32_u24", vXr, 3072, w))
    e(vop("v_lshl_add_u32", vXr, i16, 6, vXr))
    e(vop("v_lshl_add_u32", vXr, t0, 4, vXr))
    e(vop("v_add_u32", vXr, XOFF, vXr))
    e(vop("v_lshlrev_b32", vKVd, 11, w))
    e(vop("v_lshl_add_u32", vKVd, r4, 8, vKVd))
    e(vop("v_lshl_add_u32", vKVd, g, 6, vKVd))
    e(vop("v_lshl_add_u32", vKVd, c4, 4, vKVd))
    e(vop("v_lshlrev_b32", vWqd, 16, w))
    e(vop("v_lshl_add_u32", vWqd, r4, 13, vWqd))
    e(vop("v_lshl_add_u32", vWqd, g, 6, vWqd))
    e(vop("v_lshl_add_u32", vWqd, c4, 4, vWqd))
    e(vop("v_add_u32", vWqd2, 32768, vWqd))
    e(vop("v_sub_u32", t0, 0, g))
    e(vop("v_and_b32", t0, 3, t0))
    e(vop("v_xor_b32", t0, t0, c4))
    e(vop("v_lshrrev_b32", t1, 2, vLane))
    e(vop("v_mul_u32_u24", vXd[0], 48, w))
    e(vop("v_add_u32", vXd[0], vXd[0], t1))
    e(vop("v_lshlrev_b32", vXd[0], 10, vXd[0]))
    e(vop("v_lshl_add_u32", vXd[0], t0, 4, vXd[0]))
    e(vop("v_add_u32", vXd[1], 16384, vXd[0]))
    e(vop("v_add_u32", vXd[2], 32768, vXd[0]))
    e(sop("s_mul_i32", sCK[0], sW, 2 * 1056))
    e(sop("s_add_u32", sCK[1], sCK[0], 32))
    e(sop("s_add_u32", sCK[2], sCK[0], VOFF))
    e(sop("s_add_u32", sCK[3], sCK[0], VOFF + 32))
    e(sop("s_lshl_b32", sCW[0], sW, 11))
    e(sop("s_and_b32", sT0, sW, 1)); e(sop("s_lshl_b32", sT0, sT0, 3)); e(sop("s_add_u32", sCW[0], sCW[0], sT0))
    e(sop("s_lshr_b32", sT0, sW, 1)); e(sop("s_lshl_b32", sT0, sT0, 4)); e(sop("s_add_u32", sCW[0], sCW[0], sT0))
    e(sop("s_add_u32", sCW[0], sCW[0], WOFF))
    e(sop("s_add_u32", sCW[1], sCW[0], 1024))
    e(sop("s_mul_i32", sCX[0], sW, 3072)); e(sop("s_add_u32", sCX[0], sCX[0], XOFF))
    e(sop("s_add_u32", sCX[1], sCX[0], 1024)); e(sop("s_add_u32", sCX[2], sCX[0], 2048))
    c = struct.unpack("<I", struct.pack("<f", math.log2(math.e) / math.sqrt(128.0)))[0]
    e(sop("s_mov_b32", sC[0], c)); e(sop("s_mov_b32", sC[1], c))
    e(wait_lg0())
    e(scmp("s_cmp_eq_u32", sT2, 0))
    px, pk, pv_, pq, po = s(48, 2), s(50, 2), s(52, 2), s(54, 2), s(56, 2)
    e(sop("s_cselect_b64", px, s(48, 2), s(58, 2)))
    e(sop("s_cselect_b64", pk, s(50, 2), s(60, 2)))
    e(sop("s_cselect_b64", pv_, s(52, 2), s(62, 2)))
    e(sop("s_cselect_b64", pq, s(54, 2), s(64, 2)))
    e(sop("s_cselect_b64", po, s(56, 2), s(66, 2)))

    def srd(dst, ptr, offreg, size):
        e(sop("s_add_u32", dst[0], ptr[0], offreg))
        e(sop("s_addc_u32", dst[1], ptr[1], 0))
        e(sop("s_mov_b32", dst[2], size))
        e(sop("s_mov_b32", dst[3], 0x20000))

    t, t2 = s(58), s(59)
    e(sop("s_mul_i32", t, sT3, 196608)); srd(sX, px, t, 196608)
    e(sop("s_lshl_b32", t, sJ, 10)); e(sop("s_sub_u32", t2, 4194304, t)); srd(sWq, pq, t, t2)
    e(sop("s_lshl_b32", t, sT3, 5)); e(sop("s_lshl_b32", t2, sJ, 2)); e(sop("s_add_u32", t, t, t2))
    e(sop("s_lshl_b32", t, t, 17))
    srd(sK, pk, t, 524288)
    e(sop("s_add_u32", sV[0], pv_[0], t)); e(sop("s_addc_u32", sV[1], pv_[1], 0))
    e(sop("s_sub_u32", sV[0], sV[0], 16384)); e(sop("s_subb_u32", sV[1], sV[1], 0))
    e(sop("s_mov_b32", sV[2], 524288 + 16384)); e(sop("s_mov_b32", sV[3], 0x20000))
    e(sop("s_lshl_b32", t, sJ, 19)); srd(sWo, po, t, 524288)
    e(sop("s_mul_i32", t, sT3, 393216)); e(sop("s_lshl_b32", t2, sT2, 10)); e(sop("s_add_u32", t, t, t2))
    e(sop("s_sub_u32", t2, 6291456, t)); srd(sOut, s(68, 2), t, t2)
    e(sop("s_mul_i32", t, sPair, PAIRWS)); e(sop("s_add_u32", t, t, E("WSOFF", 0) << 20)); srd(sWS, s(72, 2), t, PAIRWS)
    e(sop("s_mov_b32", t, 0)); srd(sDbg, s(70, 2), t, 256)
    e(sop("s_mov_b32", t, 64 << 20)); srd(sDump, s(72, 2), t, 64 << 20)
    return o


def publish_xcc():
    t0, t1 = vT[12], vT[13]
    return [sop("s_add_u32", sT0, sXcc, 1), vop("v_mov_b32", t0, sT0),
            sop("s_lshl_b32", sT0, sPair, 3), sop("s_add_u32", sT0, sT0, sJ), vop("v_mov_b32", t1, sT0),
            scmp("s_cmp_lg_u32", sW, 0), branch("s_cbranch_scc1", "L_noxcc"),
            raw("s_mov_b64 exec, 1", "salu", wr=["exec"]),
            cond(bstore_op("buffer_store_byte", t0, t1, sDbg, 0, flags="sc1")),
            raw("s_mov_b64 exec, -1", "salu", wr=["exec"]),
            label("L_noxcc")]


def cond(i):
    i.note = "cond"
    return i


def q0_phase():
    init = []
    e = init.append
    e(sop("s_mov_b32", sWqo, 0)); e(sop("s_mov_b32", sXo, 0))
    for st in range(3):
        e(sop("s_mov_b32", sStE, st * STG))
        for grp in dma_wq(0, st + 1) + dma_x(0, st + 1):
            init.extend(grp)
        e(sop("s_add_u32", sWqo, sWqo, 32 * 8192)); e(sop("s_add_u32", sXo, sXo, 64))
    e(sop("s_mov_b32", sStE, 0))
    init.extend([m0(sStE, sCK[2]), dma(vKVd, sK, 0, 0, nt=True, stage=16),
                 m0(sStE, sCK[3]), dma(vKVd, sK, 0, 1024, nt=True, stage=16)])
    if not E("NOPF"):
        t0, t1 = vT[12], vT[13]
        if MAPX:
            e(sop("s_mul_i32", sT0, sJ, 192)); e(sop("s_mul_i32", sT1, sW, 48)); e(sop("s_add_u32", sT0, sT0, sT1))
            e(vop("v_add_u32", t0, sT0, vLane)); e(vop("v_lshlrev_b32", t0, 7, t0))
            e(bload(vT[14], t0, sX, 0))
            e(sop("s_and_b32", sT0, sPair, 3)); e(sop("s_lshl_b32", sT0, sT0, 7)); e(sop("s_lshl_b32", sT1, sW, 5))
            e(sop("s_add_u32", sT0, sT0, sT1))
            e(vop("v_lshrrev_b32", t1, 1, vLane)); e(vop("v_add_u32", t1, sT0, t1)); e(vop("v_lshlrev_b32", t1, 13, t1))
            e(vop("v_and_b32", t0, 1, vLane)); e(vop("v_lshl_add_u32", t1, t0, 7, t1))
            e(bload(vT[15], t1, sWq, 0, flags="nt" if WQ_NT else ""))
        else:
            e(sop("s_and_b32", sT0, sJ, 3)); e(sop("s_mul_i32", sT0, sT0, 384)); e(sop("s_mul_i32", sT1, sW, 96))
            e(sop("s_add_u32", sT0, sT0, sT1))
            e(vop("v_add_u32", t0, sT0, vLane)); e(vop("v_lshlrev_b32", t0, 7, t0))
            e(bload(vT[14], t0, sX, 0))
            e(vop("v_add_u32", t0, 8192, t0))
            e(bload(vT[15], t0, sX, 0))
            e(sop("s_and_b32", sT0, sPair, 7)); e(sop("s_lshl_b32", sT0, sT0, 6)); e(sop("s_lshl_b32", sT1, sW, 4))
            e(sop("s_add_u32", sT0, sT0, sT1))
            e(vop("v_bfe_u32", t1, vLane, 1, 4)); e(vop("v_add_u32", t1, sT0, t1)); e(vop("v_lshlrev_b32", t1, 13, t1))
            e(vop("v_and_b32", t0, 1, vLane)); e(vop("v_lshl_add_u32", t1, t0, 7, t1))
            e(bload(vT[11], t1, sWq, 0, flags="nt" if WQ_NT else ""))
    e(sop("s_mov_b32", sStE, 3 * STG)); e(sop("s_mov_b32", sStO, 0))
    e(sop("s_mov_b32", sDelta, 2 * STG))
    e(sop("s_mov_b32", sKV, 8192))
    for k in range(96):
        e(vop("v_accvgpr_write_b32", Qacc[k], 0))
    put("q0_init", stamp("start") + init + stamp("issued"))

    def step(T, tail, par, wq_real=True, kv=False, vv=False, L=3):
        units = [unit_qp(dt, par, par, False) for dt in range(8)]
        groups = []
        if kv:
            groups += dma_k(par)
        if vv:
            groups += dma_v(par)
        groups += dma_wq(par) + dma_x(par)
        n = sum(len(u.mfmas) for u in tail) + 3 * (8 - L)
        sp = [(2 + (k * (n - 3)) // len(groups), grp) for k, grp in enumerate(groups)]
        post = adv_wq() + adv_x() + toggle_write(par)
        if kv:
            post += adv_kv()
        if par == 1:
            post += adv_read_pair([vWq, vXr])
        return schedule(tail, units, L, [], sp, OPEN(), post=post, pre_reads=x_reads(par, par), light=True)

    c0, t = step(0, [], 0)
    c1, t1 = step(1, t, 1)
    put("q0_first", c0 + c1 + [sop("s_mov_b32", sCnt, 5)])
    c0, t = step(2, clone_tail(t1), 0)
    c1, t2 = step(3, t, 1)
    body = [label("L_Q0")] + c0 + c1 + loop_ctl("L_Q0")
    add_block("q0_loop", body)
    trace.extend(body * 5)
    c0, t = step(12, clone_tail(t1), 0)
    c1, t = step(13, t, 1, kv=True)
    c2, t = step(14, t, 0, kv=True, vv=True)
    c3, t = step(15, t, 1, kv=True, vv=True, L=0)
    put("q0_last", c0 + c1 + c2 + c3)


def qk0_units(par, base=None, extra=0):
    order = [(kt, ks) for ks in range(4) for kt in range(2)]
    return [unit_qk(kt, ks, par, 0, base, extra) for (kt, ks) in order]


def generic_units(par, i_par, qp=True, qk=True, pv=True, qp_first=False, pv_first=False, pv_early=False):
    sb_next = (i_par + 1) & 1
    pb_prev = (i_par + 1) & 1
    QP = (lambda d: unit_qp(d, par, 0, qp_first))
    QK = (lambda n: unit_qk(n >> 2, n & 3, par, sb_next))
    PV = (lambda d: unit_pv(d, par, pb_prev, pv_first))
    q, k, p = "QP", "QK", "PV"
    if qp and qk and pv and not pv_early:
        seq = [(k, 0), (p, 0), (q, 0), (q, 1), (k, 1), (q, 2), (q, 3), (p, 1), (q, 4), (q, 5), (k, 2), (q, 6),
               (q, 7), (p, 2), (p, 3), (k, 3), (p, 4), (k, 4), (p, 5), (p, 6), (p, 7), (k, 5), (k, 6), (k, 7)]
    elif qp and qk and pv:
        seq = [(p, 0), (p, 1), (p, 2), (p, 3), (q, 0), (p, 4), (p, 5), (q, 1), (p, 6), (p, 7), (q, 2), (q, 3),
               (k, 0), (q, 4), (q, 5), (k, 1), (q, 6), (q, 7), (k, 2), (k, 3), (k, 4), (k, 5), (k, 6), (k, 7)]
    elif qk and pv and not pv_early:
        seq = [(p, 0), (k, 0), (p, 1), (k, 1), (p, 2), (k, 2), (p, 3), (k, 3), (p, 4), (k, 4), (p, 5), (p, 6),
               (p, 7), (k, 5), (k, 6), (k, 7)]
    elif qk and pv:
        seq = [(p, n) for n in range(8)] + [(k, n) for n in range(8)]
    elif qp and qk:
        seq = [(k, 0), (k, 1), (q, 0), (q, 1), (k, 2), (q, 2), (q, 3), (k, 3), (q, 4), (q, 5), (k, 4),
               (q, 6), (q, 7), (k, 5), (k, 6), (k, 7)]
    elif pv:
        seq = [(p, n) for n in range(8)]
    elif qp:
        seq = [(q, n) for n in range(8)]
    fn = {"QP": QP, "QK": QK, "PV": PV}
    return [fn[kk](n) for (kk, n) in seq]


def spread(groups, n, start=3):
    end = n - max(4, n // 7)
    return [(start + (k * (end - start)) // max(len(groups), 1), grp) for k, grp in enumerate(groups)]


def step_vmem(par, qp, kv=True, wo=False):
    if wo:
        return wo_pre_groups(*wo), []
    groups = []
    post = []
    if kv and not NOKV:
        groups += dma_k(par) + dma_v(par)
    if kv:
        post += adv_kv()
    if qp:
        groups += dma_wq(par) + dma_x(par)
        post += adv_wq() + adv_x()
    post += toggle_write(par)
    return groups, post


def gen_step(tail, i_par, qp=True, qk=True, pv=True, qp_first=False, pv_first=False, sm_first=False,
             oepi=None, L=None, last_of_pair=False, wo=False):
    if L is None:
        L = LAG
    par = i_par
    units = generic_units(par, i_par, qp, qk, pv, qp_first, pv_first, oepi is not None)
    ntail = sum(len(u.mfmas) for u in tail)
    sm = softmax_ops(i_par, i_par, sm_first)
    nsp = ntail + sum(len(u.mfmas) for u in units[:len(units) - L])
    if oepi is not None:
        eo = oepi_ops(*oepi)
        fill = []
        ia = ib = 0
        while ia < len(sm) or ib < len(eo):
            if ia < len(sm):
                fill.append((sm[ia], ntail)); ia += 1
            for _ in range(3):
                if ib < len(eo):
                    fill.append((eo[ib], nsp)); ib += 1
    else:
        fill = [(op, ntail) for op in sm]
    groups, post = step_vmem(par, qp, True, wo)
    if last_of_pair:
        post += adv_read_pair([vK, vV, vWq, vXr] if qp else [vK, vV])
    code, nt = schedule(tail, units, L, fill, spread(groups, nsp), OPEN(), post=post,
                        pre_reads=x_reads(par, 0) if qp else (), light=(oepi is None))
    return code, nt


def check_ops():
    return []


def block_C(tail, qp, final=False):
    code14, t = gen_step(tail, 0, qp=qp, wo=(tuple(u for u in (0, 1) if u < WD), 78) if final else False)
    if final:
        code14 = wo_setup() + code14
    par = 1
    ntail = sum(len(u.mfmas) for u in t)
    sm = softmax_ops(1, 1)
    fill = [(op, ntail) for op in sm] + [(op, ntail) for op in lreduce_ops()]
    if final:
        unitsA = generic_units(par, 1, qp=False, qk=False, pv=True)
    else:
        unitsA = generic_units(par, 1, qp=True, qk=False, pv=False)
    nsp = ntail + sum(len(u.mfmas) for u in unitsA)
    groups, post = step_vmem(par, qp, True, (tuple(u for u in (2, 3) if u < WD), 79) if final else False)
    codeA, tA = schedule(t, unitsA, 0, fill, spread(groups, nsp), OPEN(), post=post,
                         pre_reads=x_reads(par, 0) if qp else ())
    codeA += check_ops()
    if final:
        return code14 + codeA, []
    pvu = generic_units(par, 1, qp=False, qk=False, pv=True)
    units = pvu + qk0_units(par)
    fillB = [(op, 24) for op in qconv_ops()]
    codeB, tB = schedule([], units, 3, fillB, [], [], post=adv_read_pair([vK, vV, vWq, vXr]))
    return code14 + codeA + codeB, tB


def attention():
    vB = vT2[0]
    pre = [vop("v_add_u32", vB, VOFF, vK), sop("s_mov_b32", sHead, 0)]
    put("x01", stamp("q0done") + pre)
    qku = qk0_units(0, vB)
    code, tail0x = schedule([], qku, 0, [(op, 0) for op in qconv_ops()], [], [])
    put("conv0", code + [wait_lg0()])
    if STOP == "q0":
        put("dump", dump([Qc, S[0]]) + finish())
        return
    fr_save = G.fr
    G.fr = (G.fr - 8) % 8 + 8
    tailC = qk0_units(1)[-3:]
    fr0 = G.fr % 8
    assert fr0 == fr_save % 8
    c0, t = gen_step([], 0, pv=False, qp_first=True, sm_first=True)
    c1, tA = gen_step(t, 1, pv_first=True, last_of_pair=True)
    A0 = stamp("conv0done") + c0 + c1 + [sop("s_mov_b32", sCnt, 6)] + stamp("A0done") + [branch("s_branch", "L_B")]
    c0, t = gen_step(clone_tail(tailC), 0, qp_first=True, sm_first=True, oepi=(O1, True))
    c1, tA2 = gen_step(t, 1, pv_first=True, last_of_pair=True)
    A12 = [label("L_A12")] + c0 + c1 + [sop("s_mov_b32", sCnt, 6)] + stamp("A12done(last)")
    c0, t = gen_step(clone_tail(tA), 0)
    c1, tB = gen_step(t, 1, last_of_pair=True)
    B = [label("L_B")] + c0 + c1 + loop_ctl("L_B")
    C, tC = block_C(clone_tail(tA), True)
    C = stamp("Bdone(last)") + C + stamp("Cdone(last)")
    C += [sop("s_add_u32", sHead, sHead, 1), scmp("s_cmp_lt_u32", sHead, 3), branch("s_cbranch_scc1", "L_A12")]
    assert [m.text for u in tC for m in u.mfmas] == [m.text for u in tailC for m in u.mfmas]
    assert [m.text for u in tA for m in u.mfmas] == [m.text for u in tB for m in u.mfmas] == \
           [m.text for u in tA2 for m in u.mfmas]
    c0, t = gen_step(clone_tail(tailC), 0, qp=False, sm_first=True, oepi=(Qacc.sub(0, 48), False))
    c1, tA3 = gen_step(t, 1, qp=False, pv_first=True, last_of_pair=True)
    A3 = c0 + c1 + [sop("s_mov_b32", sCnt, 6)] + stamp("A3done")
    c0, t = gen_step(clone_tail(tA3), 0, qp=False)
    c1, tB3 = gen_step(t, 1, qp=False, last_of_pair=True)
    B3 = [label("L_B3")] + c0 + c1 + loop_ctl("L_B3")
    C3, _ = block_C(clone_tail(tA3), False, final=True)
    units = generic_units(0, 0, qp=False, qk=False, pv=True)
    fillE = [(op, 24) for op in oepi_ops(Qacc.sub(48, 48), False)]
    groups, post = step_vmem(0, False, True, (tuple(u for u in (4,) if u < WD), 80))
    Eb, _ = schedule([], units, 0, fillE, spread(groups, 24, 1), OPEN(), post=post)
    C3 = stamp("B3done") + C3 + adv_read_pair([vK, vV]) + Eb + stamp("C3done")
    for nm, b in (("A0", A0), ("A12", A12), ("B", B), ("C", C), ("A3", A3), ("B3", B3), ("C3", C3)):
        add_block(nm, b)
    trace.extend(A0 + B * 6 + C + (A12 + B * 6 + C) * 2 + A3 + B3 * 6 + C3)
    if STOP == "att":
        put("dump", dump([O0, O1, Qacc]) + finish())


RB = 32768
WD = E("WD", 5)
SUM = v(16, 48)
LD = v(64, 24)
SEL = vT.sub(0, 6)
vF = v(88, 2)
vFl = v(90)
vThrHi = v(91)
vStamp = v(92, 2)
vA, vB_, vC = v(94), v(95), v(97)
vZero = v(96)
vLim = v(98)
sW2K = s(74)
sBaseM, sBaseP = s(75), s(76)
sTog = s(77)
sFlagMine = s(78)
sFlagDst = s(15)
sSrcOff = s(20)
sSrcBit = s(21)
sPos = s(82)
sWoCur = s(72)
sMask = s(70, 2)
sKn = s(17)
sDo = s(16)
sPrev2 = s(18)
sFlagBase = s(23)
sSrcOff2 = s(22)
sDiag = s(19)
sIss = s(79)
sWoE = s(80)
sEarly = s(81)
sPlLds = s(20)
sFlLds = s(21)
vFlD, vFlR, vPlR = v(99), v(100), v(101)


def unit_wo(tl, ks2, nt, q):
    f = nextfrag()
    t8 = 2 * q + tl
    ks = 2 * t8 + ks2
    base = vWoE if (nt & 1) == 0 else vWoO
    off = q * 16384 + tl * 8192 + ks2 * 4096 + (nt >> 1) * 512
    reads = [ds_tr(f.sub(0, 2), base, off), ds_tr(f.sub(2, 2), base, off + 2048)]
    ms = []
    for qt in range(3):
        D = ACC.sub((nt * 3 + qt) * 4, 4)
        B = OSLOT[ks >> 2].sub(((ks & 3) * 3 + qt) * 4, 4)
        ms.append(mfma(D, f, B, 0 if ks == 0 else D))
    return Unit(reads, ms, f"WO{t8}_{ks2}_{nt}")


def dma_wo(base, imm, rel):
    c = sWoCur
    return [[sop("s_add_u32", "m0", base, imm), sop("s_add_u32", c, sWoT, sWoS), sop("s_add_u32", c, c, sWoE),
             dma(vWod, sWo, c, 0, nt=WO_NT, stage=rel)],
            [sop("s_add_u32", "m0", base, imm + 1024), dma(vWod2, sWo, c, 0, nt=WO_NT, stage=rel)],
            [sop("s_add_u32", "m0", base, imm + 8192), sop("s_add_u32", c, c, 65536),
             dma(vWod, sWo, c, 0, nt=WO_NT, stage=rel)],
            [sop("s_add_u32", "m0", base, imm + 8192 + 1024), dma(vWod2, sWo, c, 0, nt=WO_NT, stage=rel)]]


def adv_wo():
    if E("WOHOT"):
        return []
    return [sop("s_add_u32", sWoT, sWoT, 131072),
            scmp("s_cmp_ge_u32", sWoT, 524288),
            sop("s_cselect_b32", sWoT, 0, sWoT),
            sop("s_cselect_b32", sT0, 128, 0),
            sop("s_add_u32", sWoS, sWoS, sT0),
            sop("s_and_b32", sWoS, sWoS, 1023),
            sop("s_add_u32", sIss, sIss, 1),
            scmp("s_cmp_ge_u32", sIss, 32),
            sop("s_cselect_b32", sWoE, 0x10000000, 0)]


def wo_pre_groups(us, T):
    g = []
    for u in us:
        grp = dma_wo(sW2K, RB + u * 16384, 81 + u - T)
        grp[-1] = grp[-1] + adv_wo()
        g += grp
    return g


def wo_setup():
    o = []
    e = o.append
    t0, t1 = vT[12], vT[13]
    e(vop("v_bfe_u32", t0, vLane, 2, 3))
    e(vop("v_lshrrev_b32", t1, 6, vTid))
    e(vop("v_lshl_add_u32", t1, t1, 4, t0))
    e(vop("v_lshlrev_b32", vWod, 10, t1))
    e(vop("v_lshrrev_b32", t1, 5, vLane))
    e(vop("v_lshl_add_u32", vWod, t1, 6, vWod))
    e(vop("v_lshrrev_b32", t0, 2, t0))
    e(vop("v_lshlrev_b32", t0, 1, t0))
    e(vop("v_and_b32", t1, 3, vLane))
    e(vop("v_xor_b32", t1, t1, t0))
    e(vop("v_lshl_add_u32", vWod, t1, 4, vWod))
    e(vop("v_add_u32", vWod2, 8192, vWod))
    e(sop("s_lshl_b32", sW2K, sW, 11))
    e(sop("s_mov_b32", sWoT, 0)); e(sop("s_mov_b32", sIss, 0)); e(sop("s_mov_b32", sWoE, 0))
    e(sop("s_add_u32", sWoS, sJ, 1)); e(sop("s_and_b32", sWoS, sWoS, 7)); e(sop("s_lshl_b32", sWoS, sWoS, 7))
    return o


def wo_read_setup():
    o = []
    e = o.append
    t0, t1 = vT[12], vT[13]
    e(raw("s_memrealtime s[84:85]", wr=[s(84, 2)]))
    e(vop("v_lshrrev_b32", t0, 5, vLane))
    e(vop("v_lshlrev_b32", t0, 10, t0))
    e(vop("v_bfe_u32", t1, vLane, 2, 3))
    e(vop("v_lshl_add_u32", t0, t1, 6, t0))
    e(vop("v_and_b32", t1, 3, vLane))
    e(vop("v_lshl_add_u32", t0, t1, 3, t0))
    e(vop("v_add_u32", t0, RB, t0))
    e(vop("v_bfe_u32", t1, vLane, 4, 1))
    e(vop("v_lshl_add_u32", vWoE, t1, 5, t0))
    e(vop("v_xor_b32", t1, 1, t1))
    e(vop("v_lshl_add_u32", vWoO, t1, 5, t0))
    e(vop("v_lshrrev_b32", t0, 6, vTid))
    e(vop("v_mul_u32_u24", t0, 6144, t0))
    e(vop("v_lshl_add_u32", vPst, vLane, 4, t0))
    e(vop("v_and_b32", vFl, 7, vLane)); e(vop("v_lshlrev_b32", vFl, 3, vFl))
    e(vop("v_mov_b32", vZero, 0))
    e(sop("s_mul_i32", sPlLds, sW, 6144)); e(sop("s_lshl_b32", sFlLds, sW, 10)); e(sop("s_add_u32", sFlLds, sFlLds, FLB))
    e(vop("v_and_b32", vFlD, 3, vLane)); e(vop("v_lshlrev_b32", vFlD, 4, vFlD))
    e(vop("v_add_u32", vFlR, sFlLds, vFl))
    e(vop("v_lshlrev_b32", vPlR, 4, vLane)); e(vop("v_add_u32", vPlR, sPlLds, vPlR))
    e(vop("v_mov_b32", vLim, 0x40000000))
    e(sop("s_add_u32", sStart[0], sStart[0], 2000)); e(sop("s_addc_u32", sStart[1], sStart[1], 0))
    e(vop("v_mov_b32", vThrHi, sStart[1]))
    e(wait_lg0())
    e(vop("v_mov_b32", vStamp[0], s(84)))
    e(sop("s_xor_b32", sT2, s(84), s(85))); e(sop("s_xor_b32", sT2, sT2, MAGIC))
    e(vop("v_mov_b32", vStamp[1], sT2))
    e(sop("s_mul_i32", sPrev, sJ, 9 * 24576)); e(sop("s_add_u32", sPrev2, sPrev, 4096))
    e(sop("s_mov_b32", sDiag, sPrev))
    e(sop("s_mov_b32", sNext, sJ))
    e(sop("s_mov_b32", sPos, 1)); e(sop("s_mov_b32", sEarly, 0))
    e(sop("s_lshl_b32", sT0, sJ, 2)); e(sop("s_add_u32", sT0, sT0, sW)); e(sop("s_lshl_b32", sT0, sT0, 7))
    e(sop("s_add_u32", sFlagMine, sT0, FLAGOFF))
    e(sop("s_lshl_b32", sT0, sJ, 3)); e(sop("s_add_u32", sFlagBase, sT0, FLAGOFF))
    e(sop("s_mov_b32", sTog, 0)); e(sop("s_mov_b32", sBaseM, sW2K)); e(sop("s_mov_b32", sBaseP, sW2K))
    e(sop("s_mov_b32", sDelta, 65536))
    t0, t1 = vT[8], vT[9]
    o += [vop("v_mov_b32", SEL[0], 0), vop("v_mov_b32", SEL[1], 0), vop("v_mov_b32", SEL[4], 0),
          vop("v_mov_b32", SEL[5], 0),
          vop("v_lshrrev_b32", t0, 4, vLane), vop("v_bfe_u32", t1, vLane, 2, 2),
          vcmp("v_cmp_eq_u32", "vcc", t0, t1),
          vop("v_and_b32", t0, 1, vLane), vop("v_lshlrev_b32", t0, 4, t0),
          vop("v_mov_b32", t1, 0x3f80), vop("v_lshlrev_b32", t0, t0, t1),
          vop("v_cndmask_b32", t0, 0, t0),
          vop("v_bfe_u32", t1, vLane, 1, 1),
          vcmp("v_cmp_eq_u32", "vcc", 0, t1),
          vop("v_cndmask_b32", SEL[2], 0, t0),
          vop("v_sub_u32", SEL[3], t0, SEL[2])]
    return o


PLB = 0
FLB = 24576


def flag_load():
    return bload(vF, vFl, sWS, sFlagMine, flags="sc1")


def flag_dma(rel):
    return [sop("s_mov_b32", "m0", sFlLds), dma(vFlD, sWS, sFlagMine, 0, stage=rel, flags="sc1")]


def flag_read():
    return ds_b64(vF, vFlR, 0)


def part_dma(rels):
    o = []
    for f in range(6):
        o.append([sop("s_add_u32", "m0", sPlLds, f * 1024), sop("s_add_u32", sT3, sSrcOff, f * 1024),
                  dma(vPst, sWo if E("PLHOT") else sWS, 0 if E("PLHOT") else sT3, 0, stage=rels[f],
                      flags=os.environ.get("PLF", "sc1").replace("_", " ").strip())])
    return o


def part_reads():
    return [ds_b128(LD.sub(4 * f, 4), vPlR, f * 1024) for f in range(6)]


def flag_eval():
    VCC = [("x", "vcc")]
    return [vop("v_xor_b32", vA, vF[0], vF[1]),
            Ins(f"v_subrev_co_u32 {vB_}, vcc, {sStart[0]}, {vF[0]}", "valu", rd=regs_of(sStart[0]) + regs_of(vF[0]),
                wr=regs_of(vB_) + VCC),
            nop(1),
            Ins(f"v_addc_co_u32 {vC}, vcc, 0, {vThrHi}, vcc", "valu", rd=regs_of(vThrHi) + VCC, wr=regs_of(vC) + VCC),
            vop("v_xor_b32", vA, vA, vC),
            vcmp("v_cmp_gt_u32", sMask, vLim, vB_),
            vcmp("v_cmp_eq_u32", "vcc", MAGIC, vA),
            nop(3),
            Ins(f"s_and_b32 {sMask[0]}, {sMask[0]}, vcc_lo", "salu", rd=regs_of(sMask[0]) + VCC,
                wr=regs_of(sMask[0]) + [("x", "scc")]),
            sop("s_and_b32", sMask[0], sMask[0], sSrcBit)] + ([scmp("s_cmp_eq_u32", 0, 0)] if E("NOCHK") else [])


def src_setup(k):
    return [sop("s_sub_u32", sT0, sJ, k), sop("s_and_b32", sT0, sT0, 7),
            sop("s_lshl_b32", sSrcBit, 1, sT0),
            sop("s_lshl_b32", sT1, sJ, 3), sop("s_add_u32", sT0, sT0, sT1),
            sop("s_mul_i32", sSrcOff, sT0, 24576), sop("s_add_u32", sSrcOff2, sSrcOff, 4096)]


def part_loads():
    if E("NOLD"):
        return []
    return [bload(LD.sub(4 * f, 4), vPst, sWS, sSrcOff if f < 4 else sSrcOff2, off=(f % 4) * 1024,
                  flags=os.environ.get("PLF", "sc1").replace("_", " ").strip())
            for f in range(6)]


def part_acc(dst):
    o = []
    if E("NOACC"):
        return o
    SelLo, SelHi = SEL.sub(2, 4), SEL.sub(0, 4)
    for f in range(6):
        a_, qt = f // 3, f % 3
        for h, sel in ((0, SelLo), (1, SelHi)):
            D = dst.sub(((2 * a_ + h) * 3 + qt) * 4, 4)
            o.append(mfma(D, sel, LD.sub(4 * f, 4), D))
    return o


def pack_ops():
    ops = []
    for nt in range(4):
        for qt in range(3):
            src = ACC.sub((nt * 3 + qt) * 4, 4)
            d = PK.sub(((nt >> 1) * 3 + qt) * 4, 4)
            ops.append(vop("v_cvt_pk_bf16_f32", d[2 * (nt & 1)], src[0], src[1]))
            ops.append(vop("v_cvt_pk_bf16_f32", d[2 * (nt & 1) + 1], src[2], src[3]))
    return ops


def wo_units(q):
    return [unit_wo(tl, ks2, nt, q) for tl in range(2) for ks2 in range(2) for nt in range(4)]


def flag_addr(first_dummy):
    o = [sop("s_add_u32", sT0, sNext, 7), sop("s_and_b32", sT0, sT0, 7)]
    if first_dummy:
        o += [scmp("s_cmp_eq_u32", sPos, 1), sop("s_cselect_b32", sT0, sJ, sT0)]
    o += [sop("s_lshl_b32", sT0, sT0, 2), sop("s_add_u32", sT0, sT0, sW), sop("s_lshl_b32", sT0, sT0, 7),
          sop("s_add_u32", sFlagDst, sT0, sFlagBase)]
    return o


PROF2 = E("PROF2")
NE = E("NEARLY", 5)
GREGS = [v(16 + 4 * i, 4) for i in range(12)] + [v(64 + 4 * i, 4) for i in range(6)] + \
        [v(104 + 4 * i, 4) for i in range(8)] + [v(208 + 4 * i, 4) for i in range(6)] + \
        [a(4 * i, 4) for i in range(12)]


def mask_of(ks):
    o = [sop("s_mov_b32", sSrcBit, 0)]
    for k in ks:
        o += [sop("s_sub_u32", sT0, sJ, k), sop("s_and_b32", sT0, sT0, 7), sop("s_lshl_b32", sT0, 1, sT0),
              sop("s_or_b32", sSrcBit, sSrcBit, sT0)]
    return o


def g_loads(ks, n0):
    blf = os.environ.get("BLF", "sc1").replace("_", " ").strip()
    o = []
    n = n0
    for k in ks:
        o += src_setup(k)
        for f in range(6):
            o.append(bload(GREGS[n], vPst, sWS, sSrcOff if f < 4 else sSrcOff2, off=(f % 4) * 1024, flags=blf))
            n += 1
    return o


def g_accs(n0, cnt, slots=True):
    o = []
    SelLo, SelHi = SEL.sub(2, 4), SEL.sub(0, 4)
    for n in range(n0, n0 + cnt):
        f = n % 6
        a_, qt = f // 3, f % 3
        if slots:
            o.append(vslot())
        for h, sel in ((0, SelLo), (1, SelHi)):
            D = ACC.sub(((2 * a_ + h) * 3 + qt) * 4, 4)
            o.append(mfma(D, sel, GREGS[n], D))
    return o


def acc_time(idx, inner):
    if not PROF2:
        return inner
    r = s(8 + idx - 14)
    return ([raw("s_memtime s[48:49]", wr=[s(48, 2)]), wait_lg0(), sop("s_mov_b32", s(15), s(48))] + inner +
            [raw("s_memtime s[48:49]", wr=[s(48, 2)]), wait_lg0(), sop("s_sub_u32", s(48), s(48), s(15)),
             sop("s_add_u32", r, r, s(48))])


def wo_loop(tail_in, last):
    sfx = "L" if last else "S"
    fl = os.environ.get("STS", "sc1").replace("_", " ").strip()
    tail = clone_tail(tail_in)
    body = [label("L_WO" + sfx)]
    skip = {}

    def only(ins_list, pred):
        for i in ins_list:
            skip[id(i)] = pred
        return ins_list

    def store(k, q):
        st = bstore(PK.sub(k * 4, 4), vPst, sWS, sPrev if k < 4 else sPrev2, off=(k % 4) * 1024, flags=fl)
        st.stage = None if last else 5 - q
        return [st] if not NOST else [nop(0)]

    early = []
    if last:
        for k in range(1, NE + 1):
            pre = src_setup(k)[:-1] + [scmp("s_cmp_lg_u32", sEarly, 0), sop("s_cselect_b32", sSrcOff, sSrcOff, sDiag),
                                       sop("s_add_u32", sSrcOff2, sSrcOff, 4096)]
            lds_ = [i for i in g_loads([k], 6 * (k - 1)) if i.kind == "vm_load"]
            early.append(pre + [lds_[0]])
            early += [[x] for x in lds_[1:]]
    for q in range(4):
        units = wo_units(q)
        ntail = sum(len(u.mfmas) for u in tail)
        c = (WD + q) % 8
        groups = [] if last else dma_wo(sBaseP if c < 4 else sBaseM, RB + c * 16384, WD)
        fill, post, opening = [], [], OPEN()
        flagst = flag_addr(True) + [bstore(vStamp, vZero, sWS, sFlagDst, flags="sc1")]
        other = []
        gp = {0: (5, 9, 13, 17), 1: (18, 24, 30, 36), 2: (3, 13, 23, 33), 3: (3, 13, 23, 33)}[q]
        other = [(g_, grp) for g_, grp in zip(gp, groups)]
        if q == 0:
            fill = [(op, ntail) for op in pack_ops()]
            other += [(26, store(0, q)), (32, store(1, q)), (38, store(2, q)), (44, store(3, q))]
            if last:
                opening = opening + [raw("s_waitcnt vmcnt(4)", "other", rd=[vF])] + mask_of(list(range(1, NE + 1))) + \
                          flag_eval() + [scmp("s_cmp_eq_u32", sMask[0], sSrcBit), sop("s_cselect_b32", sEarly, 1, 0)]
        elif q == 1:
            other += [(2, flagst), (6, store(4, q)), (12, store(5, q))]
        elif q == 3 and not last:
            blk = [scmp("s_cmp_eq_u32", sPos, 7), branch("s_cbranch_scc0", "L_nofs"), cond(flag_load())]
            only(blk[2:], lambda pos: False)
            opening = opening + blk + [label("L_nofs")]
        if last:
            n_here = {0: 8, 1: 8, 2: 8, 3: 6}[q] if NE == 5 else (len(early) + 3 - q) // (4 - q)
            take, early = early[:n_here], early[n_here:]
            g0, g1 = {0: (2, 24), 1: (15, 46), 2: (2, 46), 3: (2, 30)}[q]
            other += [(g0 + (i_ * (g1 - g0)) // max(len(take), 1), grp) for i_, grp in enumerate(take)]
        sp = sorted(other, key=lambda x: x[0])
        if not last:
            post += adv_wo()
        if q == 3 and not last:
            post += [sop("s_xor_b32", sTog, sTog, 65536), sop("s_sub_u32", sBaseM, sW2K, sTog),
                     sop("s_add_u32", sBaseP, sW2K, sTog)]
            post += adv_read_pair([vWoE, vWoO])
            post += [sop("s_add_u32", sNext, sNext, 1), sop("s_and_b32", sNext, sNext, 7),
                     sop("s_lshl_b32", sT0, sNext, 3), sop("s_add_u32", sT0, sT0, sJ),
                     sop("s_mul_i32", sPrev, sT0, 24576), sop("s_add_u32", sPrev2, sPrev, 4096),
                     sop("s_add_u32", sPos, sPos, 1)]
        code, tail = schedule(tail, units, LAG, fill, sp, opening, post=post)
        body += code
    assert not early
    if last:
        return body, body, tail
    body += [scmp("s_cmp_le_u32", sPos, 7), branch("s_cbranch_scc1", "L_WO" + sfx)]
    tr = []
    for pos in range(1, 8):
        tr += [i for i in body if skip.get(id(i), lambda p: True)(pos)]
    return body, tr, tail


def outproj():
    fr0 = G.fr
    dummy = wo_units(3)[-LAG:]
    G.fr = fr0
    z = []
    if PROF2 or E("PROF4"):
        for i_ in range(7):
            z.append(sop("s_mov_b32", s(8 + i_), 0))
        z += [raw("s_memtime s[48:49]", wr=[s(48, 2)]), wait_lg0(), sop("s_mov_b32", s(14), s(48))]
    put("wo_pre", wo_read_setup() + z)
    bS, trS, tail = wo_loop(dummy, False)
    add_block("WOS", bS)
    trace.extend(trS)
    G.fr = fr0
    bL, trL, tail = wo_loop(tail, True)
    add_block("WOL", bL)
    trace.extend(trL)
    fin = stamp("WOdone") + [lslot()] + [m for u in clone_tail(tail) for m in u.mfmas]
    def spin_flags(mask_code, sfx):
        o = mask_code + [sop("s_mov_b32", sCnt, 0x200000), label("L_spin" + sfx), flag_load(), wait_vm0()]
        o += flag_eval() + [scmp("s_cmp_eq_u32", sMask[0], sSrcBit), branch("s_cbranch_scc1", "L_got" + sfx),
                            raw("s_sleep 1"), sop("s_sub_u32", sCnt, sCnt, 1), scmp("s_cmp_lg_u32", sCnt, 0),
                            branch("s_cbranch_scc1", "L_spin" + sfx), label("L_got" + sfx)]
        return o
    early = list(range(1, NE + 1))
    late = list(range(NE + 1, 8))
    fin += [wait_vm0(), sop("s_add_u32", sNext, sNext, 1)] + flag_addr(False) + \
           [bstore(vStamp, vZero, sWS, sFlagDst, flags="sc1")]
    fin += stamp("drained")
    slow_e = spin_flags(mask_of(early), "A") + g_loads(early, 0) + [wait_vm0()]
    fin_tr = fin + [scmp("s_cmp_lg_u32", sEarly, 0), branch("s_cbranch_scc1", "L_haveE")]
    fin_st = fin_tr + slow_e + [label("L_haveE")]
    rest0 = g_accs(0, 6 * NE, slots=False)
    rest0 += spin_flags(mask_of(late), "B") + stamp("flagsB") + g_loads(late, 30) + g_accs(30, 6 * len(late))
    add_block("final0", fin_st + rest0)
    trace.extend(fin_tr + slow_e + rest0)
    rest = stamp("gathered")
    t0, t1, vo = vT[8], vT[9], vT[10]
    rest += [vop("v_lshrrev_b32", t0, 6, vTid), vop("v_mul_u32_u24", t0, 48, t0), vop("v_and_b32", t1, 15, vLane),
             vop("v_add_u32", t0, t0, t1), vop("v_lshlrev_b32", vo, 11, t0),
             vop("v_lshrrev_b32", t0, 4, vLane), vop("v_lshl_add_u32", vo, t0, 3, vo),
             sop("s_lshl_b32", sT0, sJ, 7), sop("s_mov_b32", sT1, 16 * 2048), sop("s_mov_b32", sT2, 32 * 2048),
             sop("s_add_u32", sT1, sT1, sT0), sop("s_add_u32", sT2, sT2, sT0)]
    for nt in range(4):
        for qt in range(3):
            src = ACC.sub((nt * 3 + qt) * 4, 4)
            d = v(16 + (nt * 3 + qt) * 2, 2)
            rest.append(vop("v_cvt_pk_bf16_f32", d[0], src[0], src[1]))
            rest.append(vop("v_cvt_pk_bf16_f32", d[1], src[2], src[3]))
            rest.append(bstore(d, vo, sOut, [sT0, sT1, sT2][qt], off=nt * 32))
    rest += [wait_vm0()] + stamp("end") + stamp_dump()
    put("final", rest)


def main():
    put("pro", prologue())
    q0_phase()
    attention()
    if STOP == "":
        outproj()
        put("fin", finish())
    traces = [trace]
    if hasattr(G, "alt"):
        n0, alts = G.alt
        for trS in alts:
            traces.append(trace[:n0] + trS + trace[G.alt_end:])
    for tr in traces:
        resolve_waits(tr, T0=-1)
    for tr in traces:
        resolve_hazards(tr)
    static = []
    for nm in layout:
        static.append(comment(f"---- block {nm}"))
        static += blocks[nm]
    lines = emit(static)
    hdr = open(f"cdna_kernels/{NAME}.s.ref").read().split("; Override launch geometry")[0]
    out = [hdr.rstrip("\n"),
           f"; @launch grid=(256,1,1) block=(256,1,1) lds={LDS_BYTES}",
           '.amdgcn_target "amdgcn-amd-amdhsa--gfx950"', ".text", f".globl {NAME}_kernel", ".p2align 8",
           f".type {NAME}_kernel,@function", f"{NAME}_kernel:"]
    out += lines
    out += ['.section .rodata,"a"', ".p2align 6", f".amdhsa_kernel {NAME}_kernel",
            "  .amdhsa_next_free_vgpr 512", "  .amdhsa_next_free_sgpr 102", "  .amdhsa_accum_offset 256",
            "  .amdhsa_group_segment_fixed_size 0", "  .amdhsa_kernarg_size 104", "  .amdhsa_user_sgpr_count 2",
            "  .amdhsa_user_sgpr_kernarg_segment_ptr 1", "  .amdhsa_system_sgpr_workgroup_id_x 1",
            "  .amdhsa_float_denorm_mode_32 3", "  .amdhsa_float_denorm_mode_16_64 3",
            ".end_amdhsa_kernel"]
    open(OUTF, "w").write("\n".join(out) + "\n")
    nins = sum(1 for l in lines if l.startswith("    "))
    print(f"wrote {OUTF}: {nins} instructions", file=sys.stderr)
    if PROF:
        open(OUTF + ".stamps", "w").write("\n".join(STAMPS))


main()
```

```python
import os
from fw import *


SOFT_POST = True
TE_START = int(os.environ.get('TE_START', '9'))
TE_SPAN = float(os.environ.get('TE_SPAN', '0.8'))
SMODE = int(os.environ.get('SMODE', '1'))
RL_DEFAULT = int(os.environ.get('RL', '12'))


class Unit:
    def __init__(self, reads, mfmas, name=""):
        self.reads, self.mfmas, self.name = reads, mfmas, name


def cost(ins):
    if ins.kind == "trans":
        return 2
    if ins.kind in ("valu", "perm", "rfl"):
        return 1
    return 0


def schedule(tail, units, L, fillers, specials=(), opening=(), RL=None, tail_fill_start=0, flush_end=True,
             extra_reads=(), heavy=None, post=(), light=False, pre_reads=(), sp_in_ds=False, seq_reads=None, open_slot=True, mid_reads=None):
    if RL is None:
        RL = RL_DEFAULT
    nun = len(units) - L
    spine = [m for u in tail for m in u.mfmas] + [m for u in units[:nun] for m in u.mfmas]
    n = len(spine)
    new_tail = units[nun:]
    ntail = sum(len(u.mfmas) for u in tail)
    rd_gap = {}
    pre = []
    pos = ntail
    if ntail == 0:
        pre = list(opening)
        opening = ()
    first_free = 1 if opening else 0
    nextg = first_free
    if ntail == 0:
        pre.extend(pre_reads)
        pre_reads = ()
    pr = list(pre_reads)
    if seq_reads is not None:
        for i_, r_ in enumerate(seq_reads):
            rd_gap[first_free + i_] = [r_]
        assert first_free + len(seq_reads) <= n
        pr = []
    for u in (units if seq_reads is None else []):
        g = max(pos - RL, nextg)
        if ntail == 0 and pos < RL:
            pre.extend(u.reads)
        else:
            for r in u.reads:
                g = max(g, nextg)
                assert g < n and g < pos, ("read does not fit", u.name, g, n, pos)
                rd_gap.setdefault(g, []).append(r)
                nextg = g + 1
                g += 1
            if mid_reads is not None and u is units[mid_reads[0]]:
                pr = list(mid_reads[1])
            if pr:
                rd_gap.setdefault(nextg, []).append(pr.pop(0))
                nextg += 1
        pos += len(u.mfmas)
    assert not pr
    owner = {}
    for u in units:
        for r in u.reads:
            owner[id(r)] = u
    for g_, rds in rd_gap.items():
        for r in rds:
            u = owner.get(id(r))
            for j in range(g_ + 1, n):
                if spine[j].rd & r.wr:
                    if u is not None:
                        assert any(spine[j] is m for m in u.mfmas), ("fragment WAR", r.text, g_, j, spine[j].text)
                    break
    F = [f for f in fillers]
    nf = len(F)
    pred_m = [-1] * nf
    succ_m = [n] * nf
    pred_f = [[] for _ in range(nf)]
    for i, (ins, rp) in enumerate(F):
        for j, m in enumerate(spine):
            conflict = (m.wr & (ins.rd | ins.wr)) or (m.rd & ins.wr)
            if not conflict:
                continue
            if j < rp:
                pred_m[i] = max(pred_m[i], j)
            else:
                succ_m[i] = min(succ_m[i], j)
        for k in range(i):
            o = F[k][0]
            if (o.wr & (ins.rd | ins.wr)) or (o.rd & ins.wr):
                pred_f[i].append(k)
    for i in range(nf - 1, -1, -1):
        for k in pred_f[i]:
            succ_m[k] = min(succ_m[k], succ_m[i])
    raw_m = [-1] * nf
    for i, (ins, rp) in enumerate(F):
        for j in range(min(rp, n)):
            if spine[j].wr & (ins.rd | ins.wr):
                raw_m[i] = j
    total = sum(cost(f[0]) for f in F)
    done = [False] * nf
    emitted_gap = [None] * nf
    out = list(pre)
    if pre:
        out.append(lslot())
    sp = list(specials)
    cum = 0

    def ready(i, g):
        if done[i]:
            return False
        if pred_m[i] > g:
            return False
        if raw_m[i] >= 0 and g - raw_m[i] < 3:
            return False
        for k in pred_f[i]:
            if not done[k]:
                return False
            if F[k][0].kind == "trans" and emitted_gap[k] == g and (F[k][0].wr & F[i][0].rd):
                return False
        return True

    def emit_f(i, g):
        nonlocal cum
        out.append(F[i][0])
        done[i] = True
        emitted_gap[i] = g
        cum += cost(F[i][0])

    def flush_before(g):
        for i in range(nf):
            if not done[i] and succ_m[i] <= g:
                stack = [i]
                order = []
                seen = set()

                def visit(x):
                    if x in seen or done[x]:
                        return
                    seen.add(x)
                    for k in pred_f[x]:
                        visit(k)
                    order.append(x)
                visit(i)
                for x in order:
                    assert pred_m[x] < g, ("impossible filler order", F[x][0].text, pred_m[x], g)
                    emit_f(x, g - 1)

    def pick(g, allow_trans, allow_v):
        for i in range(nf):
            if done[i]:
                continue
            k = F[i][0].kind
            if k == "trans" and not allow_trans:
                continue
            if k != "trans" and not allow_v:
                continue
            if ready(i, g):
                return i
        return None

    sp_gap = {}
    tmp = list(specials)
    for g in range(n):
        if (g == 0 and opening) or (g in rd_gap and not sp_in_ds):
            continue
        if tmp and tmp[0][0] <= g:
            sp_gap[g] = tmp.pop(0)[1]
    sp = tmp
    postq = []
    SCC = ("x", "scc")
    if SOFT_POST:
        grps = []
        for op in post:
            if SCC in op.rd and grps:
                grps[-1].append(op)
            else:
                grps.append([op])
        for grp in grps:
            e_ = -1
            wr = set().union(*[o.wr for o in grp]) - {SCC}
            rd = set().union(*[o.rd for o in grp]) - {SCC}

            def conf(x):
                return ((x.rd | x.wr) & wr) or (x.wr & rd)
            for g_, sg in sp_gap.items():
                if any(conf(x) for x in sg):
                    e_ = max(e_, g_)
            for g_, rds in rd_gap.items():
                if any(conf(x) for x in rds):
                    e_ = max(e_, g_)
            if sp:
                e_ = n
            if opening and any(conf(x) for x in opening):
                e_ = max(e_, 0)
            postq.append([grp, e_])
        post = []

    def soft(g, maxn=1, valu_ok=False):
        k = 0
        i = 0
        while i < len(postq) and k < maxn:
            grp, e_ = postq[i]
            ok = e_ < g and (valu_ok or all(o.kind == "salu" for o in grp))
            if ok:
                wr = set().union(*[o.wr for o in grp]) - {SCC}
                rd = set().union(*[o.rd for o in grp]) - {SCC}
                for j in range(i):
                    for o in postq[j][0]:
                        if ((o.rd | o.wr) & wr) or (o.wr & rd):
                            ok = False
            if ok:
                out.extend(grp)
                postq.pop(i)
                k += len(grp)
            else:
                i += 1
        return k
    free = [g for g in range(n) if not ((g == 0 and opening) or g in rd_gap or g in sp_gap)]
    ntrans = sum(1 for f in F if f[0].kind == "trans")
    extra = max(0, ntrans - len(free))
    dsg = sorted(rd_gap.keys())
    te = set()
    if extra and heavy is None and light:
        cand = [g for g in dsg if g >= TE_START]
        for k in range(extra):
            te.add(cand[((2 * k + 1) * int(len(cand) * TE_SPAN)) // (2 * extra)])
    for g in range(n):
        flush_before(g)
        out.append(spine[g])
        target = total * (g + 1) / max(n - tail_fill_start, 1) if heavy is None else heavy(g, n, total)
        if g == 0 and opening:
            out.extend(opening)
            if open_slot:
                out.append(lslot())
            continue
        if g in rd_gap:
            rds = rd_gap[g]
            out.append(rds[0])
            assert len(rds) == 1
            if g in sp_gap:
                out.extend(sp_gap[g])
                continue
            i = None
            if g in te:
                i = pick(g, True, False)
            if i is None:
                i = pick(g, False, True)
            if i is not None:
                emit_f(i, g)
            else:
                soft(g, 1, True)
            if not light:
                while cum + 0.5 < target - 1.5:
                    i = pick(g, True, True)
                    if i is None:
                        break
                    emit_f(i, g)
            continue
        if g in sp_gap:
            grp = list(sp_gap[g])
            if SMODE == 1 and g not in rd_gap:
                soft(g, 1)
            if not open_slot:
                out.extend(grp)
            elif grp[-1].kind == "dma":
                out.extend(grp[:-1]); out.append(lslot()); out.append(grp[-1])
            else:
                out.append(lslot()); out.extend(grp)
            if not light:
                while cum + 0.5 < target - 1.5:
                    i = pick(g, True, True)
                    if i is None:
                        break
                    emit_f(i, g)
            continue
        left = n - 1 - g
        pend = sum(1 for it in postq if it[1] < g)
        if SMODE == 0:
            soft(g, 1 if pend <= left else 2)
        if open_slot:
            out.append(lslot())
        i = pick(g, True, False)
        if i is not None:
            emit_f(i, g)
        else:
            k_ = 0
            for _ in range(2):
                i = pick(g, False, True)
                if i is not None:
                    emit_f(i, g); k_ += 1
            if k_ == 0:
                soft(g, 3, True)
        if not light:
            while cum + 0.5 < target - 1.5:
                i = pick(g, True, True)
                if i is None:
                    break
                emit_f(i, g)
    for item in sp:
        out.extend(item[1])
    if flush_end:
        for i in range(nf):
            if not done[i]:
                stack = []

                def visit2(x):
                    if done[x]:
                        return
                    for k in pred_f[x]:
                        visit2(k)
                    emit_f(x, n)
                visit2(i)
    for it in postq:
        out.extend(it[0])
    out.extend(post)
    return out, new_tail
```

```python
import sys, os, copy, struct, math
sys.path.insert(0, os.path.dirname(os.path.abspath(__file__)))
from fw import *
from sched import *

NAME = "concat_heads__mha_block_cached__mha_block_cached__near_ridge"
STOP = os.environ.get("STOP", "")
OUTF = sys.argv[1] if len(sys.argv) > 1 else f"cdna_kernels/{NAME}.s"
E = lambda k, d=0: int(os.environ.get(k, d))
PROF = E("PROF")
LAG = E("LAG", 4)
MAPX = E("MAPX", 1)
os.environ.setdefault("WQ_NT", "1"); os.environ.setdefault("WO_NT", "1")
WQ_NT, WO_NT, NOX, NOWQ, NOKV, NOST = (E(k) for k in ("WQ_NT", "WO_NT", "NOX", "NOWQ", "NOKV", "NOST"))

VOFF = 8448
WOFF = 16896
STG = 25120
NST = 4
XR = 4 * STG
XSL = 24576
LDS_BYTES = 163840
FLAGOFF = 1572864
PAIRWS = FLAGOFF + 8192
MAGIC = 0x5bd1e995
MAGICF = 0x2c1b3c6d

sX, sK, sV, sWq, sWo, sWS, sOut, sDbg = [s(8 + 4 * i, 4) for i in range(8)]
sW = s(40)
sJ = s(41)
sPair = s(42)
sKV = s(43)
sXo = s(44)
sWqo = s(45)
sStE = s(46)
sStO = s(47)
sCK = [s(74), s(75), s(76), s(77)]
sCW = [s(78), s(79)]
sXw = s(80)
sXwx = s(81)
sXq = s(82)
sDelta = s(83)
sDx = s(99)
sT0, sT1, sT2, sT3 = s(84), s(85), s(86), s(87)
sC = s(88, 2)
sCnt = s(90)
sHead = s(91)
sDump = s(92, 4)
sPrev = s(96)
sNext = s(97)
sXcc = s(98)
sStart = s(100, 2)
sWoB = s(43)
sCO = [s(74), s(75), s(76), s(77)]

vTid = v(0)
vK, vV, vWq = v(1), v(2), v(3)
vXr = [v(4), v(10)]
vKVd, vWqd, vWqd2 = v(5), v(6), v(7)
vXd = [v(8), v(9), v(15), v(244), v(245), v(246)]
vKVd2 = v(247)
vL = [v(11), v(12), v(13)]
vLane = v(14)
S = [v(16, 24), v(40, 24)]
P = [v(64, 12), v(76, 12)]
Qc = v(88, 48)
Oacc = v(136, 96)
vT = v(232, 12)
vRL = [v(248, 1), v(249, 1), v(250, 1)]
vT2 = v(254, 2)
vWoE, vWoO, vPst, vWod, vWod2 = v(1), v(2), v(3), v(6), v(7)
ACC = v(136, 48)
PK = v(184, 24)

Qacc = a(0, 96)
O0 = a(96, 48)
O1 = a(144, 48)
XS = [a(192, 12), a(204, 12)]
FR = [a(216 + 4 * i, 4) for i in range(8)]
OSLOT = [O0, O1, Qacc.sub(0, 48), Qacc.sub(48, 48)]


def St(b, kt, qt): return S[b].sub((kt * 3 + qt) * 4, 4)
def Pt(b, qt): return P[b].sub(qt * 4, 4)
def Qct(ks, qt): return Qc.sub((ks * 3 + qt) * 4, 4)
def tile(base, dt, qt): return base.sub((dt * 3 + qt) * 4, 4)


class G:
    fr = 0


def nextfrag():
    f = FR[G.fr % 8]
    G.fr += 1
    return f


def unit_qp(dt, par, xs, first):
    f = nextfrag()
    off = par * STG + (dt >> 1) * 256 + (dt & 1) * 8
    reads = [ds_tr(f.sub(0, 2), vWq, off), ds_tr(f.sub(2, 2), vWq, off + 1024)]
    ms = []
    for qt in range(3):
        D = tile(Qacc, dt, qt)
        ms.append(mfma(D, f, XS[xs].sub(qt * 4, 4), 0 if first else D))
    return Unit(reads, ms, f"QP{dt}")


def x_reads(e, xs):
    return [ds_b128(XS[xs].sub(qt * 4, 4), vXr[e], qt * 2048) for qt in range(3)]


def unit_qk(kt, ks, par, sb, base=None, extra=0):
    f = nextfrag()
    off = par * STG + kt * 4224 + ks * 256 + extra
    reads = [ds_b128(f, base or vK, off)]
    ms = []
    for qt in range(3):
        D = St(sb, kt, qt)
        ms.append(mfma(D, f, Qct(ks, qt), 0 if ks == 0 else D))
    return Unit(reads, ms, f"QK{kt}{ks}")


def unit_pv(dt, par, pb, first=False):
    f = nextfrag()
    off = par * STG + (dt >> 1) * 256 + (dt & 1) * 32
    reads = [ds_tr(f.sub(0, 2), vV, off), ds_tr(f.sub(2, 2), vV, off + 4224)]
    ms = []
    for qt in range(3):
        D = tile(Oacc, dt, qt)
        ms.append(mfma(D, f, Pt(pb, qt), 0 if first else D))
    return Unit(reads, ms, f"PV{dt}")


def softmax_ops(sb, pb, first=False):
    if E("NOSM"):
        return []
    tiles = []
    for kt in range(2):
        for qt in range(3):
            t = St(sb, kt, qt)
            ex = [vop("v_exp_f32", t[r], t[r]) for r in range(4)]
            rest = []
            for r in range(4):
                if first and kt == 0 and r == 0:
                    rest.append(vop("v_mov_b32", vL[qt], t[r]))
                else:
                    rest.append(vop("v_add_f32", vL[qt], t[r], vL[qt]))
            p = Pt(pb, qt)
            rest.insert(2, vop("v_cvt_pk_bf16_f32", p[2 * kt], t[0], t[1]))
            rest.append(vop("v_cvt_pk_bf16_f32", p[2 * kt + 1], t[2], t[3]))
            tiles.append((ex, rest))
    out = list(tiles[0][0])
    for i in range(6):
        nxt = tiles[i + 1][0] if i + 1 < 6 else []
        rest = tiles[i][1]
        k = 0
        for j in range(4):
            if j < len(nxt):
                out.append(nxt[j])
            out.append(rest[k]); k += 1
            if j >= 2:
                out.append(rest[k]); k += 1
    return out


NCARRY = E("NCARRY", 8)


def split_carry(ops):
    if NCARRY == 0:
        return ops, []
    idx = [i for i, o in enumerate(ops) if o.kind != "trans"][-NCARRY:]
    return [o for i, o in enumerate(ops) if i not in idx], [ops[i] for i in idx]


def qconv_ops():
    ops = []
    n = 0
    for ks in range(4):
        for qt in range(3):
            for h in range(2):
                src = tile(Qacc, 2 * ks + h, qt)
                t = vT.sub((n % 3) * 4, 4)
                n += 1
                for r in range(4):
                    ops.append(vop("v_accvgpr_read_b32", t[r], src[r]))
                for r in range(4):
                    ops.append(vop("v_mul_f32", t[r], sC[0], t[r]))
                d = Qct(ks, qt)
                ops.append(vop("v_cvt_pk_bf16_f32", d[2 * h], t[0], t[1]))
                ops.append(vop("v_cvt_pk_bf16_f32", d[2 * h + 1], t[2], t[3]))
    return ops


def lreduce_ops():
    ops = []
    for qt in range(3):
        t = vT[8 + qt]
        l = vL[qt]
        ops.append(vop("v_mov_b32", t, l))
        ops.append(vop("v_permlane16_swap_b32", l, t))
        ops.append(vop("v_add_f32", l, l, t))
        ops.append(vop("v_mov_b32", t, l))
        ops.append(vop("v_permlane32_swap_b32", l, t))
        ops.append(vop("v_add_f32", l, l, t))
        ops.append(vop("v_rcp_f32", vRL[qt][0], l))
    return ops


def oepi_ops(dst, shift):
    ops = []
    sh = []
    if shift:
        for k in range(48):
            sh.append(vop("v_accvgpr_mov_b32", O0[k], O1[k]))
    n = 0
    for ks in range(4):
        for h in range(2):
            for qt in range(3):
                src = tile(Oacc, 2 * ks + h, qt)
                t = vT.sub((n % 2) * 6, 4)
                u = vT.sub((n % 2) * 6 + 4, 2)
                n += 1
                for r in range(4):
                    ops.append(vop("v_mul_f32", t[r], src[r], vRL[qt][0]))
                ops.append(vop("v_cvt_pk_bf16_f32", u[0], t[0], t[1]))
                ops.append(vop("v_cvt_pk_bf16_f32", u[1], t[2], t[3]))
                d = dst.sub((ks * 3 + qt) * 4, 4)
                ops.append(vop("v_accvgpr_write_b32", d[2 * h], u[0]))
                ops.append(vop("v_accvgpr_write_b32", d[2 * h + 1], u[1]))
    return sh + ops


def m0(stage_reg, const):
    return sop("s_add_u32", "m0", stage_reg, const)


def stw(par):
    return sStE if par == 0 else sStO


def dma_k(par, rel=3):
    return [[m0(stw(par), sCK[0]), dma(vKVd, sK, sKV, 0, nt=True, stage=rel)],
            [dma(vKVd2, sK, sKV, 1056, nt=True, stage=rel)]]


def dma_v(par, rel=3):
    return [[m0(stw(par), sCK[2]), dma(vKVd, sV, sKV, 0, nt=True, stage=rel)],
            [dma(vKVd2, sV, sKV, 1056, nt=True, stage=rel)]]


def dma_wq(par, rel=3):
    if NOWQ:
        return []
    return [[m0(stw(par), sCW[0]), dma(vWqd, sWq, sWqo, 0, nt=WQ_NT, stage=rel)],
            [dma(vWqd2, sWq, sWqo, 1024, nt=WQ_NT, stage=rel)]]


def dma_x(pieces, rel):
    if NOX:
        return []
    g = []
    for i in pieces:
        pre = []
        if i % 3 == 0:
            pre = [sop("s_add_u32", "m0", sXw, i * 1024)] if i else [sop("s_mov_b32", "m0", sXw)]
        g.append(pre + [dma(vXd[i], sX, sXo, (i % 3) * 1024, stage=rel)])
    return g


XE = (3 * STG) ^ (1 * STG)
XO = (0 * STG) ^ (2 * STG)


def toggle_write(par):
    return [sop("s_xor_b32", stw(par), stw(par), XE if par == 0 else XO)]


def adv_kv(): return [sop("s_add_u32", sKV, sKV, 0 if E("KVHOT") else 8192)]
def adv_x(): return [sop("s_add_u32", sXo, sXo, 0 if E("XHOT") else 128), sop("s_and_b32", sXo, sXo, 1023),
                     sop("s_xor_b32", sXw, sXw, sXwx)]


def adv_wq():
    return [sop("s_add_u32", sWqo, sWqo, 0 if E("WQHOT") else 32 * 8192),
            scmp("s_cmp_ge_u32", sWqo, 0x400000),
            sop("s_cselect_b32", sT0, 0x400000 - 256, 0),
            sop("s_sub_u32", sWqo, sWqo, sT0)]


def adv_read_pair(regs, x=False):
    val = [vop("v_add_u32", r, sDelta, r) for r in regs]
    sal = [sop("s_sub_u32", sDelta, 0, sDelta)]
    if x:
        val += [vop("v_add_u32", r, sDx, r) for r in vXr]
        sal += [sop("s_sub_u32", sDx, 0, sDx)]
    return val + sal


blocks = {}
layout = []
trace = []


def add_block(name, ins):
    blocks[name] = ins
    layout.append(name)


def put(name, code):
    add_block(name, code)
    trace.extend(code)


NSTAMP = [0]
STAMPS = []


def stamp(name):
    if not PROF:
        return []
    if E("PROFQ") and name in ("drained", "flagsB", "gathered", "A0done", "A3done", "B3done"):
        return []
    if not E("PROFQ") and name in ("T0ready", "T2", "T12"):
        return []
    i = NSTAMP[0]
    NSTAMP[0] += 1
    STAMPS.append(name)
    assert i < 20
    return [raw("s_memtime s[48:49]", wr=[s(48, 2)]), wait_lg0(), sop("s_mov_b32", s(50 + i), s(48))]


def stamp_dump():
    if not PROF:
        return []
    o = [sop("s_lshl_b32", sT0, s(2), 2), sop("s_add_u32", sT0, sT0, sW), sop("s_lshl_b32", sT0, sT0, 8),
         vop("v_mov_b32", vT2[0], 0)]
    for i in range(NSTAMP[0]):
        o.append(vop("v_mov_b32", vT2[1], s(50 + i)))
        o.append(bstore(vT2[1], vT2[0], sDump, sT0, off=4 * i))
    o += [raw("s_memrealtime s[48:49]", wr=[s(48, 2)]), wait_lg0(), sop("s_sub_u32", s(48), s(48), sStart[0]),
          sop("s_add_u32", s(48), s(48), 2000),
          vop("v_mov_b32", vT2[1], s(48)), bstore(vT2[1], vT2[0], sDump, sT0, off=4 * 40),
          vop("v_mov_b32", vT2[1], sStart[0]), bstore(vT2[1], vT2[0], sDump, sT0, off=4 * 41)]
    if E("PROF2") or E("PROF4"):
        for i in range(7):
            o.append(vop("v_mov_b32", vT2[1], s(8 + i)))
            o.append(bstore(vT2[1], vT2[0], sDump, sT0, off=4 * (24 + i)))
    return o


def OPEN():
    if E("NOBAR"):
        return [interval(), vslot(), publish(0)]
    return [interval(), vslot(), publish(0), barrier()]


def clone_tail(tail):
    return [Unit([], [copy.copy(m) for m in u.mfmas], u.name) for u in tail]


def loop_ctl(lbl):
    return [sop("s_sub_u32", sCnt, sCnt, 1), scmp("s_cmp_lg_u32", sCnt, 0), branch("s_cbranch_scc1", lbl)]


def dump(regs, base_idx=0):
    o = [sop("s_lshl_b32", sT0, s(2), 2), sop("s_add_u32", sT0, sT0, sW), sop("s_lshl_b32", sT0, sT0, 16),
         vop("v_lshlrev_b32", vT2[0], 2, vLane), nop(7), nop(7)]
    idx = base_idx
    for rr in regs:
        for k in range(rr.n):
            o.append(sop("s_add_u32", sT1, sT0, idx * 256))
            o.append(bstore(rr[k], vT2[0], sDump, sT1))
            idx += 1
    o.append(wait_all())
    return o


def finish():
    return [wait_all(), raw("s_endpgm")]


def prologue():
    o = []
    e = o.append
    e(raw("s_cmp_lt_u32 s2, 0x100", "salu", wr=["scc"]))
    e(branch("s_cbranch_scc1", "L_start"))
    e(raw("s_endpgm"))
    e(label("L_start"))
    e(raw("s_load_dwordx16 s[48:63], s[0:1], 0", wr=[s(48, 16)]))
    e(raw("s_load_dwordx4 s[64:67], s[0:1], 64", wr=[s(64, 4)]))
    e(raw("s_load_dwordx4 s[68:71], s[0:1], 80", wr=[s(68, 4)]))
    e(raw("s_load_dwordx2 s[72:73], s[0:1], 96", wr=[s(72, 2)]))
    w = vT[0]
    e(vop("v_lshrrev_b32", w, 6, vTid))
    e(vop("v_and_b32", vLane, 63, vTid))
    e(vop("v_readfirstlane_b32", sW, w))
    e(sop("s_and_b32", sT0, s(2), 7))
    e(sop("s_lshr_b32", sT1, s(2), 3))
    e(sop("s_lshr_b32", sT2, sT0, 2))
    if MAPX:
        e(sop("s_and_b32", sT3, sT0, 3))
        e(sop("s_lshl_b32", sT3, sT3, 2))
        e(sop("s_lshr_b32", sPair, sT1, 3))
        e(sop("s_add_u32", sT3, sT3, sPair))
        e(sop("s_and_b32", sJ, sT1, 7))
    else:
        e(sop("s_bfe_u32", sT3, sT0, 0x10001))
        e(sop("s_lshl_b32", sT3, sT3, 3))
        e(sop("s_and_b32", sPair, sT1, 7))
        e(sop("s_add_u32", sT3, sT3, sPair))
        e(sop("s_and_b32", sJ, sT0, 1))
        e(sop("s_lshl_b32", sJ, sJ, 2))
        e(sop("s_lshr_b32", sT1, sT1, 3))
        e(sop("s_add_u32", sJ, sJ, sT1))
    e(sop("s_lshl_b32", sPair, sT2, 4))
    e(sop("s_add_u32", sPair, sPair, sT3))
    e(raw("s_getreg_b32 s98, hwreg(20, 0, 4)", "salu", wr=[sXcc]))
    e(raw("s_memrealtime s[100:101]", wr=[sStart]))
    i16, g, r4, c4, t0, t1 = vT[1], vT[2], vT[3], vT[4], vT[5], vT[6]
    e(vop("v_and_b32", i16, 15, vLane))
    e(vop("v_lshrrev_b32", g, 4, vLane))
    e(vop("v_bfe_u32", r4, vLane, 2, 2))
    e(vop("v_and_b32", c4, 3, vLane))
    e(sop("s_movk_i32", sT0, 1056))
    e(vop("v_mul_lo_u32", vK, r4, sT0))
    e(vop("v_lshl_add_u32", vK, c4, 6, vK))
    e(vop("v_lshl_add_u32", vK, g, 4, vK))
    e(vop("v_mul_lo_u32", vV, g, sT0))
    e(vop("v_lshl_add_u32", vV, r4, 6, vV))
    e(vop("v_lshl_add_u32", vV, c4, 3, vV))
    e(vop("v_add_u32", vV, VOFF, vV))
    e(vop("v_lshlrev_b32", vWq, 11, g))
    e(vop("v_and_b32", t0, 1, g))
    e(vop("v_lshl_add_u32", vWq, t0, 3, vWq))
    e(vop("v_lshrrev_b32", t0, 1, g))
    e(vop("v_lshl_add_u32", vWq, t0, 4, vWq))
    e(vop("v_lshl_add_u32", vWq, r4, 6, vWq))
    e(vop("v_lshl_add_u32", vWq, c4, 4, vWq))
    e(vop("v_add_u32", vWq, WOFF, vWq))
    e(vop("v_bfe_u32", t0, vLane, 1, 3))
    e(vop("v_xor_b32", t0, t0, g))
    e(vop("v_mul_u32_u24", vXr[0], 6144, w))
    e(vop("v_bfe_u32", t1, vLane, 3, 1)); e(vop("v_lshl_add_u32", vXr[0], t1, 10, vXr[0]))
    e(vop("v_and_b32", t1, 7, vLane)); e(vop("v_lshl_add_u32", vXr[0], t1, 7, vXr[0]))
    e(vop("v_add_u32", vXr[0], XR, vXr[0]))
    e(vop("v_xor_b32", t1, 4, t0))
    e(vop("v_lshl_add_u32", vXr[1], t1, 4, vXr[0]))
    e(vop("v_lshl_add_u32", vXr[0], t0, 4, vXr[0]))
    e(vop("v_lshlrev_b32", vKVd, 11, w))
    e(vop("v_lshl_add_u32", vKVd, r4, 8, vKVd))
    e(vop("v_lshl_add_u32", vKVd, g, 6, vKVd))
    e(vop("v_lshl_add_u32", vKVd, c4, 4, vKVd))
    e(vop("v_lshlrev_b32", vWqd, 16, w))
    e(vop("v_lshl_add_u32", vWqd, r4, 13, vWqd))
    e(vop("v_lshl_add_u32", vWqd, g, 6, vWqd))
    e(vop("v_lshl_add_u32", vWqd, c4, 4, vWqd))
    e(vop("v_add_u32", vWqd2, 32768 - 1024, vWqd))
    e(vop("v_add_u32", vKVd2, 32, vKVd))
    e(vop("v_add_u32", vKVd, 64, vKVd))
    for h in range(2):
        e(vop("v_lshrrev_b32", t1, 3, vLane))
        e(vop("v_lshrrev_b32", t0, 1, t1))
        if h:
            e(vop("v_add_u32", t0, 4, t0))
        e(vop("v_and_b32", vXd[h], 7, vLane))
        e(vop("v_xor_b32", t0, t0, vXd[h]))
        e(vop("v_mul_u32_u24", vXd[h], 48, w))
        e(vop("v_add_u32", vXd[h], vXd[h], t1))
        if h:
            e(vop("v_add_u32", vXd[h], 8, vXd[h]))
        e(vop("v_lshlrev_b32", vXd[h], 10, vXd[h]))
        e(vop("v_lshl_add_u32", vXd[h], t0, 4, vXd[h]))
    for i in range(5, -1, -1):
        d = (i >> 1) * 16384 - (i % 3) * 1024
        if i >= 2 or d:
            e(vop("v_add_u32", vXd[i], d & 0xffffffff, vXd[i & 1]))
    e(sop("s_mul_i32", sCK[0], sW, 2 * 1056))
    e(sop("s_add_u32", sCK[1], sCK[0], 32))
    e(sop("s_add_u32", sCK[2], sCK[0], VOFF))
    e(sop("s_add_u32", sCK[3], sCK[0], VOFF + 32))
    e(sop("s_lshl_b32", sCW[0], sW, 11))
    e(sop("s_and_b32", sT0, sW, 1)); e(sop("s_lshl_b32", sT0, sT0, 3)); e(sop("s_add_u32", sCW[0], sCW[0], sT0))
    e(sop("s_lshr_b32", sT0, sW, 1)); e(sop("s_lshl_b32", sT0, sT0, 4)); e(sop("s_add_u32", sCW[0], sCW[0], sT0))
    e(sop("s_add_u32", sCW[0], sCW[0], WOFF))
    e(sop("s_add_u32", sCW[1], sCW[0], 1024))
    e(sop("s_mul_i32", sXw, sW, 6144)); e(sop("s_add_u32", sXw, sXw, XR))
    e(sop("s_add_u32", sXwx, sXw, XSL)); e(sop("s_xor_b32", sXwx, sXwx, sXw))
    e(sop("s_mov_b32", sDx, XSL))
    c = struct.unpack("<I", struct.pack("<f", math.log2(math.e) / math.sqrt(128.0)))[0]
    e(sop("s_mov_b32", sC[0], c)); e(sop("s_mov_b32", sC[1], c))
    e(wait_lg0())
    e(scmp("s_cmp_eq_u32", sT2, 0))
    px, pk, pv_, pq, po = s(48, 2), s(50, 2), s(52, 2), s(54, 2), s(56, 2)
    e(sop("s_cselect_b64", px, s(48, 2), s(58, 2)))
    e(sop("s_cselect_b64", pk, s(50, 2), s(60, 2)))
    e(sop("s_cselect_b64", pv_, s(52, 2), s(62, 2)))
    e(sop("s_cselect_b64", pq, s(54, 2), s(64, 2)))
    e(sop("s_cselect_b64", po, s(56, 2), s(66, 2)))

    def srd(dst, ptr, offreg, size):
        e(sop("s_add_u32", dst[0], ptr[0], offreg))
        e(sop("s_addc_u32", dst[1], ptr[1], 0))
        e(sop("s_mov_b32", dst[2], size))
        e(sop("s_mov_b32", dst[3], 0x20000))

    t, t2 = s(58), s(59)
    e(sop("s_mul_i32", t, sT3, 196608)); srd(sX, px, t, 196608)
    e(sop("s_lshl_b32", t, sJ, 10)); e(sop("s_sub_u32", t2, 4194304, t)); srd(sWq, pq, t, t2)
    e(sop("s_lshl_b32", t, sT3, 5)); e(sop("s_lshl_b32", t2, sJ, 2)); e(sop("s_add_u32", t, t, t2))
    e(sop("s_lshl_b32", t, t, 17))
    srd(sK, pk, t, 524288 + 64)
    e(sop("s_sub_u32", sK[0], sK[0], 64)); e(sop("s_subb_u32", sK[1], sK[1], 0))
    e(sop("s_add_u32", sV[0], pv_[0], t)); e(sop("s_addc_u32", sV[1], pv_[1], 0))
    e(sop("s_sub_u32", sV[0], sV[0], 16384 + 64)); e(sop("s_subb_u32", sV[1], sV[1], 0))
    e(sop("s_mov_b32", sV[2], 524288 + 16384 + 64)); e(sop("s_mov_b32", sV[3], 0x20000))
    e(sop("s_lshl_b32", t, sJ, 19)); srd(sWo, po, t, 524288)
    e(sop("s_mul_i32", t, sT3, 393216)); e(sop("s_lshl_b32", t2, sT2, 10)); e(sop("s_add_u32", t, t, t2))
    e(sop("s_sub_u32", t2, 6291456, t)); srd(sOut, s(68, 2), t, t2)
    e(sop("s_mul_i32", t, sPair, PAIRWS)); e(sop("s_add_u32", t, t, E("WSOFF", 0) << 20)); srd(sWS, s(72, 2), t, PAIRWS)
    e(sop("s_mov_b32", t, 0)); srd(sDbg, s(70, 2), t, 256)
    e(sop("s_mov_b32", t, 64 << 20)); srd(sDump, s(72, 2), t, 64 << 20)
    return o


def publish_xcc():
    t0, t1 = vT[10], vT[11]
    return [sop("s_add_u32", sT0, sXcc, 1), vop("v_mov_b32", t0, sT0),
            sop("s_lshl_b32", sT0, sPair, 3), sop("s_add_u32", sT0, sT0, sJ), vop("v_mov_b32", t1, sT0),
            scmp("s_cmp_lg_u32", sW, 0), branch("s_cbranch_scc1", "L_noxcc"),
            raw("s_mov_b64 exec, 1", "salu", wr=["exec"]),
            cond(bstore_op("buffer_store_byte", t0, t1, sDbg, 0, flags="sc1")),
            raw("s_mov_b64 exec, -1", "salu", wr=["exec"]),
            label("L_noxcc")]


def cond(i):
    i.note = "cond"
    return i


def insert_after_first_barrier(code, extra):
    out = []
    done = False
    for i in code:
        out.append(i)
        if not done and i.kind == "barrier":
            out += extra
            done = True
    return out


def q0_phase():
    init = []
    e = init.append
    vWqK = vT2[1]
    sCWK = [sT2, sT3]
    e(sop("s_mov_b32", sWqo, 0)); e(sop("s_mov_b32", sXo, 0))
    e(vop("v_subrev_u32", vWqK, WOFF, vWq))

    def prefetch(half):
        t0, t1 = vT[4], vT[5]
        o = []
        a_ = o.append
        if MAPX:
            nx, ix, nw, iw = 8, sJ, 4, None
        else:
            nx, ix, nw, iw = 4, None, 8, None
        per_wg = 768 // nx
        per_w = per_wg // 4
        if MAPX:
            a_(sop("s_mul_i32", sT0, sJ, per_wg))
        else:
            a_(sop("s_and_b32", sT0, sJ, 3)); a_(sop("s_mul_i32", sT0, sT0, per_wg))
        a_(sop("s_mul_i32", sT1, sW, per_w)); a_(sop("s_add_u32", sT0, sT0, sT1))
        a_(vop("v_min_u32", t0, per_w - 1, vLane)); a_(vop("v_add_u32", t0, sT0, t0))
        a_(vop("v_and_b32", t1, 3, t0)); a_(vop("v_lshrrev_b32", t0, 2, t0)); a_(vop("v_lshlrev_b32", t0, 10, t0))
        a_(vop("v_lshl_add_u32", t0, t1, 7, t0))
        a_(bload(vT[6], t0, sX, 0, off=512 * half, flags="nt" if E("PFXNT", 1) else ""))
        per_wg = 512 // nw
        per_w = per_wg // 4
        a_(sop("s_and_b32", sT0, sPair, nw - 1)); a_(sop("s_mul_i32", sT0, sT0, per_wg))
        a_(sop("s_mul_i32", sT1, sW, per_w)); a_(sop("s_add_u32", sT0, sT0, sT1))
        a_(vop("v_min_u32", t0, per_w - 1, vLane)); a_(vop("v_add_u32", t0, sT0, t0))
        a_(vop("v_and_b32", t1, 1, t0)); a_(vop("v_lshrrev_b32", t0, 1, t0))
        a_(vop("v_add_u32", t0, 256 * half, t0)); a_(vop("v_lshlrev_b32", t0, 13, t0))
        a_(vop("v_lshl_add_u32", t0, t1, 7, t0))
        a_(bload(vT[7], t0, sWq, 0, flags="nt" if WQ_NT else ""))
        return o

    def wq2(stage_reg, rel):
        g = []
        for slot in range(2):
            g.append([sop("s_add_u32", "m0", stage_reg, sCW[0] if slot else sCWK_[0]),
                      dma(vWqd, sWq, sWqo, 0, nt=WQ_NT, stage=rel)])
            g.append([dma(vWqd2, sWq, sWqo, 1024, nt=WQ_NT, stage=rel)] + adv_wq())
        return g
    sCWK_ = [s(96), s(97)]
    e(sop("s_sub_u32", sCWK_[0], sCW[0], WOFF)); e(sop("s_sub_u32", sCWK_[1], sCW[1], WOFF))
    if not E("NOPF"):
        init += prefetch(0)
    for grp in dma_x(range(6), 1):
        init += grp
    init += adv_x()
    for st in range(3):
        e(sop("s_mov_b32", sStE, st * STG))
        for grp in wq2(sStE, st + 1):
            init += grp
    if not E("NOPF"):
        init += prefetch(1)
        e(vop("v_mov_b32", vT[9], 0)); e(sop("s_mov_b32", sT0, 16384 + 64)); e(bload(vT[10], vT[9], sV, sT0, flags="nt"))
    e(sop("s_mov_b32", sStE, 0))
    init.extend([m0(sStE, sCK[2]), dma(vKVd, sK, 0, 0, nt=True, stage=8),
                 dma(vKVd2, sK, 0, 1056, nt=True, stage=8)])
    e(sop("s_mov_b32", sStE, 3 * STG)); e(sop("s_mov_b32", sStO, 0))
    e(sop("s_mov_b32", sDelta, 2 * STG))
    e(sop("s_mov_b32", sKV, 8192))
    for k in range(96):
        e(vop("v_accvgpr_write_b32", Qacc[k], 0))
    put("q0_init", stamp("start") + init + stamp("issued"))

    def unit0(dt, par, ee):
        f = nextfrag()
        base = vWqK if ee == 0 else vWq
        off = par * STG + (dt >> 1) * 256 + (dt & 1) * 8
        reads = [ds_tr(f.sub(0, 2), base, off), ds_tr(f.sub(2, 2), base, off + 1024)]
        ms = [mfma(tile(Qacc, dt, qt), f, XS[ee].sub(qt * 4, 4), tile(Qacc, dt, qt)) for qt in range(3)]
        return Unit(reads, ms, f"Q0{ee}{dt}")

    def step(T, tail, L=4):
        par = T & 1
        units = [unit0(dt, par, ee) for ee in range(2) for dt in range(8)]
        ntail = sum(len(u.mfmas) for u in tail)
        n = ntail + 3 * (16 - L)
        xa, xb = x_reads(0, 0), x_reads(1, 1)
        R_ = lambda k: units[k].reads
        seq = [xa[0]] + R_(0) + [xa[1], xa[2]] + R_(1) + R_(2) + R_(3) + R_(4) + [xb[0]] + R_(5) + [xb[1]] + R_(6) + \
              [xb[2]] + R_(7)
        for k in range(8, 16):
            seq += R_(k)
        groups = dma_x(range(6), 1)
        groups[-1] = groups[-1] + adv_x()
        if T <= 12:
            groups += wq2(stw(par), 3)
        else:
            groups += dma_k(par) + (dma_v(par) if T >= 14 else []) + dma_wq(par)
        if T == 15:
            groups += dma_x(range(3), 3)
        post = toggle_write(par)
        if T > 12:
            post = adv_kv() + adv_wq() + post
        post_v = [vop("v_add_u32", r, sDx, r) for r in vXr] + [sop("s_sub_u32", sDx, 0, sDx)]
        if par == 1:
            post_v += adv_read_pair([vWq, vWqK])
        nrest = len(groups) - 6
        sp = [(1 + 3 * k, grp) for k, grp in enumerate(groups[:6])] + \
             [(20 + (k * (n - 24)) // nrest, grp) for k, grp in enumerate(groups[6:])]
        code, nt = schedule(tail, units, L, [], sp, OPEN(), post=post + post_v, pre_reads=xa,
                            sp_in_ds=True, mid_reads=(4, xb))
        return code, nt

    c0, t = step(8, [])
    c1, t1 = step(9, t)
    if E("PROFQ"):
        c0 = insert_after_first_barrier(c0, stamp("T0ready"))
    put("q0_first", c0 + c1 + stamp("T2") * E("PROFQ") + [sop("s_mov_b32", sCnt, 1)])
    c0, t = step(10, clone_tail(t1))
    c1, t2 = step(11, t)
    put("q0_mid", c0 + c1)
    c0, t = step(12, clone_tail(t2))
    c1, t = step(13, t)
    c2, t = step(14, t)
    c3, t = step(15, t, L=0)
    put("q0_last", stamp("T12") * E("PROFQ") + c0 + c1 + c2 + c3)


def qk0_units(par, base=None, extra=0):
    order = [(kt, ks) for ks in range(4) for kt in range(2)]
    return [unit_qk(kt, ks, par, 0, base, extra) for (kt, ks) in order]


def generic_units(par, i_par, qp=True, qk=True, pv=True, qp_first=False, pv_first=False, pv_early=False):
    sb_next = (i_par + 1) & 1
    pb_prev = (i_par + 1) & 1
    QP = (lambda d: unit_qp(d, par, 0, qp_first))
    QK = (lambda n: unit_qk(n >> 2, n & 3, par, sb_next))
    PV = (lambda d: unit_pv(d, par, pb_prev, pv_first))
    q, k, p = "QP", "QK", "PV"
    if qp and qk and pv and not pv_early:
        seq = [(k, 0), (p, 0), (q, 0), (q, 1), (k, 1), (q, 2), (q, 3), (p, 1), (q, 4), (q, 5), (k, 2), (q, 6),
               (q, 7), (p, 2), (p, 3), (k, 3), (p, 4), (p, 5), (p, 6), (p, 7), (k, 4), (k, 5), (k, 6), (k, 7)]
    elif qp and qk and pv:
        seq = [(p, 0), (p, 1), (p, 2), (p, 3), (q, 0), (p, 4), (p, 5), (q, 1), (p, 6), (p, 7), (q, 2), (q, 3),
               (k, 0), (q, 4), (q, 5), (k, 1), (q, 6), (q, 7), (k, 2), (k, 3), (k, 4), (k, 5), (k, 6), (k, 7)]
    elif qk and pv and not pv_early:
        seq = [(p, 0), (k, 0), (p, 1), (k, 1), (p, 2), (k, 2), (p, 3), (k, 3), (p, 4), (p, 5), (p, 6),
               (p, 7), (k, 4), (k, 5), (k, 6), (k, 7)]
    elif qk and pv:
        seq = [(p, n) for n in range(8)] + [(k, n) for n in range(8)]
    elif qp and qk:
        seq = [(k, 0), (k, 1), (q, 0), (q, 1), (k, 2), (q, 2), (q, 3), (k, 3), (q, 4), (q, 5), (k, 4),
               (q, 6), (q, 7), (k, 5), (k, 6), (k, 7)]
    elif pv:
        seq = [(p, n) for n in range(8)]
    elif qp:
        seq = [(q, n) for n in range(8)]
    fn = {"QP": QP, "QK": QK, "PV": PV}
    return [fn[kk](n) for (kk, n) in seq]


def spread(groups, n, start=3):
    end = n - max(4, n // 7)
    return [(start + (k * (end - start)) // max(len(groups), 1), grp) for k, grp in enumerate(groups)]


def step_vmem(par, qp, kv=True, wo=False):
    if wo:
        return wo_pre_groups(*wo), []
    groups = []
    post = []
    if qp and par == 0:
        groups += dma_x((3, 4, 5), 2)
    if kv and not NOKV:
        groups += dma_k(par) + dma_v(par)
    if kv:
        post += adv_kv()
    if qp:
        groups += dma_wq(par)
        post += adv_wq()
        if par == 1:
            groups += dma_x((0, 1, 2), 3)
        else:
            post += adv_x()
    post += toggle_write(par)
    return groups, post


def gen_step(tail, i_par, qp=True, qk=True, pv=True, qp_first=False, pv_first=False, sm_first=False,
             oepi=None, L=None, last_of_pair=False, wo=False, carry_in=True, carry_out=True):
    if L is None:
        L = LAG
    par = i_par
    units = generic_units(par, i_par, qp, qk, pv, qp_first, pv_first, oepi is not None)
    ntail = sum(len(u.mfmas) for u in tail)
    sm = softmax_ops(i_par, i_par, sm_first)
    if carry_out:
        sm, _ = split_carry(sm)
    cin = split_carry(softmax_ops(1 - i_par, 1 - i_par))[1] if carry_in else []
    nsp = ntail + sum(len(u.mfmas) for u in units[:len(units) - L])
    fill = [(op, 0) for op in cin]
    if oepi is not None:
        eo = oepi_ops(*oepi)
        ia = ib = 0
        while ia < len(sm) or ib < len(eo):
            if ia < len(sm):
                fill.append((sm[ia], ntail)); ia += 1
            for _ in range(3):
                if ib < len(eo):
                    fill.append((eo[ib], nsp)); ib += 1
    else:
        fill += [(op, ntail) for op in sm]
    groups, post = step_vmem(par, qp, True, wo)
    if last_of_pair:
        post += adv_read_pair([vK, vV, vWq], True) if qp else adv_read_pair([vK, vV])
    code, nt = schedule(tail, units, L, fill, spread(groups, nsp), OPEN(), post=post,
                        pre_reads=x_reads(par, 0) if qp else (), light=(oepi is None))
    return code, nt


def check_ops(ret):
    t0, t1 = vT[0], vT[1]
    return [vop("v_min3_f32", t0, vL[0], vL[1], vL[2]), vop("v_max3_f32", t1, vL[0], vL[1], vL[2]),
            vcmp("v_cmp_gt_f32", "vcc", 0x2b800000, t0),
            sop("s_mov_b64", s(84, 2), "vcc"),
            vcmp("v_cmp_lt_f32", "vcc", 0x53800000, t1),
            Ins("s_or_b64 s[84:85], s[84:85], vcc", "salu", rd=regs_of(s(84, 2)) + [("x", "vcc")],
                wr=regs_of(s(84, 2)) + [("x", "scc")]),
            ] + ([scmp("s_cmp_eq_u32", 0, 0)] if E("FORCEFB") else []) + [
            branch("s_cbranch_scc1", "L_slow"), label(ret)]


def slow_path():
    vKo, vVo, vVo2 = vT[2], vT[3], vT[4]
    M = [vT[5], vT[6], vT[7]]
    tt = vT[8]
    KF = [S[1].sub(4 * k, 4) for k in range(4)]
    ST = [S[0].sub(4 * k, 4) for k in range(6)]
    RAW = S[1].sub(16, 8)
    VF = P[1].sub(0, 4)
    PP = P[0]
    sHo, sI = sT0, sT1
    i16, g = RAW[0], RAW[1]
    pro = [label("L_slow"), wait_all(),
           vop("v_and_b32", i16, 15, vLane), vop("v_lshrrev_b32", g, 4, vLane),
           vop("v_lshlrev_b32", vKo, 8, i16), vop("v_lshl_add_u32", vKo, g, 4, vKo), vop("v_add_u32", vKo, 64, vKo),
           vop("v_lshlrev_b32", vVo, 10, g), vop("v_lshl_add_u32", vVo, i16, 1, vVo), vop("v_add_u32", vVo, 64, vVo),
           vop("v_add_u32", vVo2, 4096, vVo),
           sop("s_lshl_b32", sHo, sHead, 17)]
    for qt in range(3):
        pro.append(vop("v_mov_b32", M[qt], 0xff800000))
    pro.append(sop("s_mov_b32", sI, 0))

    def qk(kt_off, tiles):
        o = [bload(KF[ks], vKo, sK, sT2, off=ks * 64) for ks in range(4)] + [vslot()]
        for ks in range(4):
            for qt in range(3):
                o.append(mfma(tiles[qt], KF[ks], Qct(ks, qt), 0 if ks == 0 else tiles[qt]))
        return o
    l1 = [label("L_slow1"), sop("s_add_u32", sT2, sHo, sI)] + qk(0, ST[:3])
    for qt in range(3):
        l1 += [vop("v_max3_f32", M[qt], M[qt], ST[qt][0], ST[qt][1]), vop("v_max3_f32", M[qt], M[qt], ST[qt][2], ST[qt][3])]
    l1 += [sop("s_add_u32", sI, sI, 4096), scmp("s_cmp_lt_u32", sI, 131072), branch("s_cbranch_scc1", "L_slow1")]
    mid = []
    for qt in range(3):
        mid += [vop("v_mov_b32", tt, M[qt]), vop("v_permlane16_swap_b32", M[qt], tt), vop("v_max_f32", M[qt], M[qt], tt),
                vop("v_mov_b32", tt, M[qt]), vop("v_permlane32_swap_b32", M[qt], tt), vop("v_max_f32", M[qt], M[qt], tt),
                vop("v_mov_b32", vL[qt], 0)]
    for k in range(96):
        mid.append(vop("v_mov_b32", Oacc[k], 0))
    mid.append(sop("s_mov_b32", sI, 0))
    l2 = [label("L_slow2"), sop("s_add_u32", sT2, sHo, sI)] + qk(0, ST[:3])
    l2 += [sop("s_add_u32", sT2, sT2, 4096)] + qk(0, ST[3:])
    for kt in range(2):
        for qt in range(3):
            t = ST[kt * 3 + qt]
            for r in range(4):
                l2.append(vop("v_sub_f32", t[r], t[r], M[qt]))
            for r in range(4):
                l2.append(vop("v_exp_f32", t[r], t[r]))
            for r in range(4):
                l2.append(vop("v_add_f32", vL[qt], t[r], vL[qt]))
            l2.append(vop("v_cvt_pk_bf16_f32", PP[qt * 4 + 2 * kt], t[0], t[1]))
            l2.append(vop("v_cvt_pk_bf16_f32", PP[qt * 4 + 2 * kt + 1], t[2], t[3]))
    l2 += [sop("s_add_u32", sT2, sHo, sI), sop("s_add_u32", sT2, sT2, 16384)]
    for dt in range(8):
        for j in range(8):
            l2.append(bload_op("buffer_load_ushort", RAW[j], vVo if j < 4 else vVo2, sV, sT2, off=(j % 4) * 256 + dt * 32))
        l2.append(vslot())
        for k in range(4):
            l2.append(vop("v_lshl_or_b32", VF[k], RAW[2 * k + 1], 16, RAW[2 * k]))
        for qt in range(3):
            D = tile(Oacc, dt, qt)
            l2.append(mfma(D, VF, PP.sub(qt * 4, 4), D))
    l2 += [sop("s_add_u32", sI, sI, 8192), scmp("s_cmp_lt_u32", sI, 131072), branch("s_cbranch_scc1", "L_slow2")]
    fin = lreduce_ops()
    for k in range(12):
        fin += [vop("v_mov_b32", P[0][k], 0), vop("v_mov_b32", P[1][k], 0)]
    fin += [nop(7), nop(7), scmp("s_cmp_lt_u32", sHead, 3), branch("s_cbranch_scc1", "L_retC"), branch("s_branch", "L_retC3")]
    static = pro + l1 + mid + l2 + fin
    tr = pro + l1 * 2 + mid + l2 * 2 + fin
    return static, tr


def block_C(tail, qp, final=False):
    code14, t = gen_step(tail, 0, qp=qp, wo=(tuple(u for u in (0, 1) if u < WD), 78) if final else False)
    if final:
        code14 = wo_setup() + code14
    par = 1
    ntail = sum(len(u.mfmas) for u in t)
    sm = softmax_ops(1, 1)
    cin = split_carry(softmax_ops(0, 0))[1]
    fill = [(op, 0) for op in cin] + [(op, ntail) for op in sm] + [(op, ntail) for op in lreduce_ops()]
    if final:
        unitsA = generic_units(par, 1, qp=False, qk=False, pv=True)
    else:
        unitsA = generic_units(par, 1, qp=True, qk=False, pv=False)
    nsp = ntail + sum(len(u.mfmas) for u in unitsA)
    groups, post = step_vmem(par, qp, True, (tuple(u for u in (2, 3) if u < WD), 79) if final else False)
    codeA, tA = schedule(t, unitsA, 0, fill, spread(groups, nsp), OPEN(), post=post,
                         pre_reads=x_reads(par, 0) if qp else ())
    codeA += check_ops("L_retC3" if final else "L_retC")
    if final:
        return code14 + codeA, []
    pvu = generic_units(par, 1, qp=False, qk=False, pv=True)
    units = pvu + qk0_units(par)
    fillB = [(op, 24) for op in qconv_ops()]
    codeB, tB = schedule([], units, 3, fillB, [], [], post=adv_read_pair([vK, vV, vWq], True))
    return code14 + codeA + codeB, tB


def attention():
    vB = vT2[0]
    pre = [vop("v_add_u32", vB, VOFF, vK), sop("s_mov_b32", sHead, 0)]
    put("x01", stamp("q0done") + pre)
    qku = qk0_units(0, vB)
    code, tail0x = schedule([], qku, 0, [(op, 0) for op in qconv_ops()], [], [])
    put("conv0", code + [wait_lg0()])
    if STOP == "q0":
        put("dump", dump([Qc, S[0]]) + finish())
        return
    fr_save = G.fr
    G.fr = (G.fr - 8) % 8 + 8
    tailC = qk0_units(1)[-3:]
    fr0 = G.fr % 8
    assert fr0 == fr_save % 8
    c0, t = gen_step([], 0, pv=False, qp_first=True, sm_first=True, carry_in=False)
    c1, tA = gen_step(t, 1, pv_first=True, last_of_pair=True)
    A0 = stamp("conv0done") + c0 + c1 + [sop("s_mov_b32", sCnt, 6)] + stamp("A0done") + [branch("s_branch", "L_B")]
    c0, t = gen_step(clone_tail(tailC), 0, qp_first=True, sm_first=True, oepi=(O1, True), carry_in=False)
    c1, tA2 = gen_step(t, 1, pv_first=True, last_of_pair=True)
    A12 = [label("L_A12")] + c0 + c1 + [sop("s_mov_b32", sCnt, 6)] + stamp("A12done(last)")
    c0, t = gen_step(clone_tail(tA), 0)
    c1, tB = gen_step(t, 1, last_of_pair=True)
    B = [label("L_B")] + c0 + c1 + loop_ctl("L_B")
    C, tC = block_C(clone_tail(tA), True)
    C = stamp("Bdone(last)") + C + stamp("Cdone(last)")
    C += [sop("s_add_u32", sHead, sHead, 1), scmp("s_cmp_lt_u32", sHead, 3), branch("s_cbranch_scc1", "L_A12")]
    assert [m.text for u in tC for m in u.mfmas] == [m.text for u in tailC for m in u.mfmas]
    assert [m.text for u in tA for m in u.mfmas] == [m.text for u in tB for m in u.mfmas] == \
           [m.text for u in tA2 for m in u.mfmas]
    c0, t = gen_step(clone_tail(tailC), 0, qp=False, sm_first=True, oepi=(Qacc.sub(0, 48), False), carry_in=False)
    c1, tA3 = gen_step(t, 1, qp=False, pv_first=True, last_of_pair=True)
    A3 = c0 + c1 + [sop("s_mov_b32", sCnt, 6)] + stamp("A3done")
    c0, t = gen_step(clone_tail(tA3), 0, qp=False)
    c1, tB3 = gen_step(t, 1, qp=False, last_of_pair=True)
    B3 = [label("L_B3")] + c0 + c1 + loop_ctl("L_B3")
    C3, _ = block_C(clone_tail(tA3), False, final=True)
    units = generic_units(0, 0, qp=False, qk=False, pv=True)
    fillE = [(op, 24) for op in oepi_ops(Qacc.sub(48, 48), False)]
    groups, post = step_vmem(0, False, True, (tuple(u for u in (4,) if u < WD), 80))
    Eb, _ = schedule([], units, 0, fillE, spread(groups, 24, 1), OPEN(), post=post)
    C3 = stamp("B3done") + C3 + adv_read_pair([vK, vV]) + Eb + stamp("C3done")
    for nm, b in (("A0", A0), ("A12", A12), ("B", B), ("C", C), ("A3", A3), ("B3", B3), ("C3", C3)):
        add_block(nm, b)
    trace.extend(A0 + B * 6 + C + (A12 + B * 6 + C) * 2 + A3 + B3 * 6 + C3)
    if STOP == "att":
        put("dump", dump([O0, O1, Qacc]) + finish())


RB = 32768
WD = E("WD", 5)
SUM = v(16, 48)
LD = v(64, 24)
SEL = vT.sub(0, 6)
vF = v(88, 2)
vFl = v(90)
vThrHi = v(91)
vStamp = v(92, 2)
vA, vB_, vC = v(94), v(95), v(97)
vZero = v(96)
vLim = v(98)
sW2K = s(74)
sBaseM, sBaseP = s(75), s(76)
sTog = s(77)
sFlagMine = s(78)
sFlagDst = s(15)
sSrcOff = s(20)
sSrcBit = s(21)
sPos = s(82)
sWoCur = s(72)
sMask = s(70, 2)
sKn = s(17)
sDo = s(16)
sPrev2 = s(18)
sFlagBase = s(23)
sSrcOff2 = s(22)
sDiag = s(19)
sIss = s(79)
sWoE = s(80)
sEarly = s(81)
sPlLds = s(20)
sFlLds = s(21)
vFlD, vFlR, vPlR = v(99), v(100), v(101)


def unit_wo(tl, ks2, nt, q):
    f = nextfrag()
    t8 = 2 * q + tl
    ks = 2 * t8 + ks2
    base = vWoE if (nt & 1) == 0 else vWoO
    off = q * 16384 + tl * 8192 + ks2 * 4096 + (nt >> 1) * 512
    reads = [ds_tr(f.sub(0, 2), base, off), ds_tr(f.sub(2, 2), base, off + 2048)]
    ms = []
    for qt in range(3):
        D = ACC.sub((nt * 3 + qt) * 4, 4)
        B = OSLOT[ks >> 2].sub(((ks & 3) * 3 + qt) * 4, 4)
        ms.append(mfma(D, f, B, 0 if ks == 0 else D))
    return Unit(reads, ms, f"WO{t8}_{ks2}_{nt}")


vWod3, vWod4 = v(8), v(9)


def dma_wo(base, imm, rel, qoff):
    c = sWoCur
    first = [sop("s_add_u32", "m0", base, imm)]
    first.append(sop("s_add_u32", c, sWoB, qoff * 131072) if qoff else sop("s_mov_b32", c, sWoB))
    return [first + [dma(vWod, sWo, c, 0, nt=WO_NT, stage=rel)],
            [dma(vWod2, sWo, c, 1024, nt=WO_NT, stage=rel)],
            [sop("s_add_u32", "m0", base, imm + 8192), dma(vWod3, sWo, c, 0, nt=WO_NT, stage=rel)],
            [dma(vWod4, sWo, c, 1024, nt=WO_NT, stage=rel)]]


def adv_slice():
    return [sop("s_add_u32", sWoB, sWoB, 128), sop("s_and_b32", sWoB, sWoB, 1023)]


def wo_pre_groups(us, T):
    g = []
    for u in us:
        if u == 4:
            grp = dma_wo(sW2K, RB + ((u + 4) % 8) * 16384, 81 + u - T, 0)
            grp[0] = adv_slice() + grp[0]
        else:
            grp = dma_wo(sW2K, RB + ((u + 4) % 8) * 16384, 81 + u - T, u)
        g += grp
    return g


def wo_setup():
    o = []
    e = o.append
    t0, t1 = vT[10], vT[11]
    e(vop("v_bfe_u32", t0, vLane, 2, 3))
    e(vop("v_lshrrev_b32", t1, 6, vTid))
    e(vop("v_lshl_add_u32", t1, t1, 4, t0))
    e(vop("v_lshlrev_b32", vWod, 10, t1))
    e(vop("v_lshrrev_b32", t1, 5, vLane))
    e(vop("v_lshl_add_u32", vWod, t1, 6, vWod))
    e(vop("v_lshrrev_b32", t0, 2, t0))
    e(vop("v_lshlrev_b32", t0, 1, t0))
    e(vop("v_and_b32", t1, 3, vLane))
    e(vop("v_xor_b32", t1, t1, t0))
    e(vop("v_lshl_add_u32", vWod, t1, 4, vWod))
    e(vop("v_add_u32", vWod2, 8192 - 1024, vWod))
    e(vop("v_add_u32", vWod3, 65536, vWod))
    e(vop("v_add_u32", vWod4, 65536 + 8192 - 1024, vWod))
    e(sop("s_lshl_b32", sW2K, sW, 11))
    e(sop("s_add_u32", sWoB, sJ, 1)); e(sop("s_and_b32", sWoB, sWoB, 7)); e(sop("s_lshl_b32", sWoB, sWoB, 7))
    return o


def wo_read_setup():
    o = []
    e = o.append
    t0, t1 = vT[10], vT[11]
    e(raw("s_memrealtime s[84:85]", wr=[s(84, 2)]))
    e(vop("v_lshrrev_b32", t0, 5, vLane))
    e(vop("v_lshlrev_b32", t0, 10, t0))
    e(vop("v_bfe_u32", t1, vLane, 2, 3))
    e(vop("v_lshl_add_u32", t0, t1, 6, t0))
    e(vop("v_and_b32", t1, 3, vLane))
    e(vop("v_lshl_add_u32", t0, t1, 3, t0))
    e(vop("v_add_u32", t0, RB + 65536, t0))
    e(vop("v_bfe_u32", t1, vLane, 4, 1))
    e(vop("v_lshl_add_u32", vWoE, t1, 5, t0))
    e(vop("v_xor_b32", t1, 1, t1))
    e(vop("v_lshl_add_u32", vWoO, t1, 5, t0))
    e(vop("v_lshrrev_b32", t0, 6, vTid))
    e(vop("v_mul_u32_u24", t0, 6144, t0))
    e(vop("v_lshl_add_u32", vPst, vLane, 4, t0))
    e(vop("v_and_b32", vFl, 7, vLane)); e(vop("v_lshlrev_b32", vFl, 3, vFl))
    e(vop("v_mov_b32", vZero, 0))
    e(sop("s_mul_i32", sPlLds, sW, 6144)); e(sop("s_lshl_b32", sFlLds, sW, 10)); e(sop("s_add_u32", sFlLds, sFlLds, FLB))
    e(vop("v_and_b32", vFlD, 3, vLane)); e(vop("v_lshlrev_b32", vFlD, 4, vFlD))
    e(vop("v_add_u32", vFlR, sFlLds, vFl))
    e(vop("v_lshlrev_b32", vPlR, 4, vLane)); e(vop("v_add_u32", vPlR, sPlLds, vPlR))
    e(vop("v_mov_b32", vLim, 0x40000000))
    e(sop("s_add_u32", sStart[0], sStart[0], 2000)); e(sop("s_addc_u32", sStart[1], sStart[1], 0))
    e(vop("v_mov_b32", vThrHi, sStart[1]))
    e(wait_lg0())
    e(vop("v_mov_b32", vStamp[0], s(84)))
    e(sop("s_xor_b32", sT2, s(84), s(85))); e(sop("s_xor_b32", sT2, sT2, MAGIC))
    e(vop("v_mov_b32", vStamp[1], sT2))
    e(sop("s_mul_i32", sPrev, sJ, 9 * 24576)); e(sop("s_add_u32", sPrev2, sPrev, 4096))
    e(sop("s_mov_b32", sDiag, sPrev))
    e(sop("s_mov_b32", sNext, sJ))
    e(sop("s_mov_b32", sPos, 1)); e(sop("s_mov_b32", sEarly, 0))
    e(sop("s_lshl_b32", sT0, sJ, 2)); e(sop("s_add_u32", sT0, sT0, sW)); e(sop("s_lshl_b32", sT0, sT0, 7))
    e(sop("s_add_u32", sFlagMine, sT0, FLAGOFF))
    e(sop("s_lshl_b32", sT0, sJ, 3)); e(sop("s_add_u32", sFlagBase, sT0, FLAGOFF))
    e(sop("s_mov_b32", sTog, 0)); e(sop("s_mov_b32", sBaseM, sW2K)); e(sop("s_mov_b32", sBaseP, sW2K))
    e(sop("s_mov_b32", sDelta, (-65536) & 0xffffffff))
    t0, t1 = vT[8], vT[9]
    o += [vop("v_mov_b32", SEL[0], 0), vop("v_mov_b32", SEL[1], 0), vop("v_mov_b32", SEL[4], 0),
          vop("v_mov_b32", SEL[5], 0),
          vop("v_lshrrev_b32", t0, 4, vLane), vop("v_bfe_u32", t1, vLane, 2, 2),
          vcmp("v_cmp_eq_u32", "vcc", t0, t1),
          vop("v_and_b32", t0, 1, vLane), vop("v_lshlrev_b32", t0, 4, t0),
          vop("v_mov_b32", t1, 0x3f80), vop("v_lshlrev_b32", t0, t0, t1),
          vop("v_cndmask_b32", t0, 0, t0),
          vop("v_bfe_u32", t1, vLane, 1, 1),
          vcmp("v_cmp_eq_u32", "vcc", 0, t1),
          vop("v_cndmask_b32", SEL[2], 0, t0),
          vop("v_sub_u32", SEL[3], t0, SEL[2])]
    return o


PLB = 0
FLB = 24576


def flag_load():
    return bload(vF, vFl, sWS, sFlagMine, flags="sc1")


def flag_dma(rel):
    return [sop("s_mov_b32", "m0", sFlLds), dma(vFlD, sWS, sFlagMine, 0, stage=rel, flags="sc1")]


def flag_read():
    return ds_b64(vF, vFlR, 0)


def part_dma(rels):
    o = []
    for f in range(6):
        o.append([sop("s_add_u32", "m0", sPlLds, f * 1024), sop("s_add_u32", sT3, sSrcOff, f * 1024),
                  dma(vPst, sWo if E("PLHOT") else sWS, 0 if E("PLHOT") else sT3, 0, stage=rels[f],
                      flags=os.environ.get("PLF", "sc1").replace("_", " ").strip())])
    return o


def part_reads():
    return [ds_b128(LD.sub(4 * f, 4), vPlR, f * 1024) for f in range(6)]


def flag_eval():
    VCC = [("x", "vcc")]
    return [vop("v_xor_b32", vA, vF[0], vF[1]),
            Ins(f"v_subrev_co_u32 {vB_}, vcc, {sStart[0]}, {vF[0]}", "valu", rd=regs_of(sStart[0]) + regs_of(vF[0]),
                wr=regs_of(vB_) + VCC),
            nop(1),
            Ins(f"v_addc_co_u32 {vC}, vcc, 0, {vThrHi}, vcc", "valu", rd=regs_of(vThrHi) + VCC, wr=regs_of(vC) + VCC),
            vop("v_xor_b32", vA, vA, vC),
            vcmp("v_cmp_gt_u32", sMask, vLim, vB_),
            vcmp("v_cmp_eq_u32", "vcc", MAGIC, vA),
            nop(3),
            Ins(f"s_and_b32 {sMask[0]}, {sMask[0]}, vcc_lo", "salu", rd=regs_of(sMask[0]) + VCC,
                wr=regs_of(sMask[0]) + [("x", "scc")]),
            sop("s_and_b32", sMask[0], sMask[0], sSrcBit)] + ([scmp("s_cmp_eq_u32", 0, 0)] if E("NOCHK") else [])


def src_setup(k):
    return [sop("s_sub_u32", sT0, sJ, k), sop("s_and_b32", sT0, sT0, 7),
            sop("s_lshl_b32", sSrcBit, 1, sT0),
            sop("s_lshl_b32", sT1, sJ, 3), sop("s_add_u32", sT0, sT0, sT1),
            sop("s_mul_i32", sSrcOff, sT0, 24576), sop("s_add_u32", sSrcOff2, sSrcOff, 4096)]


def part_loads():
    if E("NOLD"):
        return []
    return [bload(LD.sub(4 * f, 4), vPst, sWS, sSrcOff if f < 4 else sSrcOff2, off=(f % 4) * 1024,
                  flags=os.environ.get("PLF", "sc1").replace("_", " ").strip())
            for f in range(6)]


def part_acc(dst):
    o = []
    if E("NOACC"):
        return o
    SelLo, SelHi = SEL.sub(2, 4), SEL.sub(0, 4)
    for f in range(6):
        a_, qt = f // 3, f % 3
        for h, sel in ((0, SelLo), (1, SelHi)):
            D = dst.sub(((2 * a_ + h) * 3 + qt) * 4, 4)
            o.append(mfma(D, sel, LD.sub(4 * f, 4), D))
    return o


def pack_ops():
    ops = []
    for nt in range(4):
        for qt in range(3):
            src = ACC.sub((nt * 3 + qt) * 4, 4)
            d = PK.sub(((nt >> 1) * 3 + qt) * 4, 4)
            ops.append(vop("v_cvt_pk_bf16_f32", d[2 * (nt & 1)], src[0], src[1]))
            ops.append(vop("v_cvt_pk_bf16_f32", d[2 * (nt & 1) + 1], src[2], src[3]))
    return ops


def wo_units(q):
    return [unit_wo(tl, ks2, nt, q) for tl in range(2) for ks2 in range(2) for nt in range(4)]


def flag_addr(first_dummy):
    o = [sop("s_add_u32", sT0, sNext, 7), sop("s_and_b32", sT0, sT0, 7)]
    if first_dummy:
        o += [scmp("s_cmp_eq_u32", sPos, 1), sop("s_cselect_b32", sT0, sJ, sT0)]
    o += [sop("s_lshl_b32", sT0, sT0, 2), sop("s_add_u32", sT0, sT0, sW), sop("s_lshl_b32", sT0, sT0, 7),
          sop("s_add_u32", sFlagDst, sT0, sFlagBase)]
    return o


PROF2 = E("PROF2")
NE = E("NEARLY", 5)
GREGS = [v(16 + 4 * i, 4) for i in range(12)] + [v(64 + 4 * i, 4) for i in range(6)] + \
        [v(104 + 4 * i, 4) for i in range(8)] + [v(208 + 4 * i, 4) for i in range(6)] + \
        [a(4 * i, 4) for i in range(12)]


def mask_of(ks):
    o = [sop("s_mov_b32", sSrcBit, 0)]
    for k in ks:
        o += [sop("s_sub_u32", sT0, sJ, k), sop("s_and_b32", sT0, sT0, 7), sop("s_lshl_b32", sT0, 1, sT0),
              sop("s_or_b32", sSrcBit, sSrcBit, sT0)]
    return o


def g_loads(ks, n0):
    blf = os.environ.get("BLF", "sc1").replace("_", " ").strip()
    o = []
    n = n0
    for k in ks:
        o += src_setup(k)
        for f in range(6):
            o.append(bload(GREGS[n], vPst, sWS, sSrcOff if f < 4 else sSrcOff2, off=(f % 4) * 1024, flags=blf))
            n += 1
    return o


def g_accs(n0, cnt, slots=True):
    o = []
    SelLo, SelHi = SEL.sub(2, 4), SEL.sub(0, 4)
    for n in range(n0, n0 + cnt):
        f = n % 6
        a_, qt = f // 3, f % 3
        if slots:
            o.append(vslot())
        for h, sel in ((0, SelLo), (1, SelHi)):
            D = ACC.sub(((2 * a_ + h) * 3 + qt) * 4, 4)
            o.append(mfma(D, sel, GREGS[n], D))
    return o


def acc_time(idx, inner):
    if not PROF2:
        return inner
    r = s(8 + idx - 14)
    return ([raw("s_memtime s[48:49]", wr=[s(48, 2)]), wait_lg0(), sop("s_mov_b32", s(15), s(48))] + inner +
            [raw("s_memtime s[48:49]", wr=[s(48, 2)]), wait_lg0(), sop("s_sub_u32", s(48), s(48), s(15)),
             sop("s_add_u32", r, r, s(48))])


def wo_loop(tail_in, last):
    sfx = "L" if last else "S"
    fl = os.environ.get("STS", "sc1").replace("_", " ").strip()
    tail = clone_tail(tail_in)
    body = [label("L_WO" + sfx)]
    skip = {}

    def only(ins_list, pred):
        for i in ins_list:
            skip[id(i)] = pred
        return ins_list

    def store(k, q):
        st = bstore(PK.sub(k * 4, 4), vPst, sWS, sPrev if k < 4 else sPrev2, off=(k % 4) * 1024, flags=fl)
        st.stage = None if last else 5 - q
        return [st] if not NOST else [nop(0)]

    early = []
    if last:
        for k in range(1, NE + 1):
            pre = src_setup(k)[:-1] + [scmp("s_cmp_lg_u32", sEarly, 0), sop("s_cselect_b32", sSrcOff, sSrcOff, sDiag),
                                       sop("s_add_u32", sSrcOff2, sSrcOff, 4096)]
            lds_ = [i for i in g_loads([k], 6 * (k - 1)) if i.kind == "vm_load"]
            early.append(pre + [lds_[0]])
            early += [[x] for x in lds_[1:]]
    for q in range(4):
        units = wo_units(q)
        ntail = sum(len(u.mfmas) for u in tail)
        c = (WD + q + 4) % 8
        assert WD == 5
        groups = [] if last else dma_wo(sBaseP if c < 4 else sBaseM, RB + c * 16384, WD, (q + 1) & 3)
        if q == 3 and not last:
            groups[0] = adv_slice() + groups[0]
        fill, post, opening = [], [], OPEN()
        flagst = flag_addr(True) + [bstore(vStamp, vZero, sWS, sFlagDst, flags="sc1")]
        other = []
        gp = {0: (5, 9, 13, 17), 1: (18, 24, 30, 36), 2: (3, 13, 23, 33), 3: (3, 13, 23, 33)}[q]
        other = [(g_, grp) for g_, grp in zip(gp, groups)]
        if q == 0:
            fill = [(op, ntail) for op in pack_ops()]
            other += [(26, store(0, q)), (32, store(1, q)), (38, store(2, q)), (44, store(3, q))]
            if last:
                opening = opening + [raw("s_waitcnt vmcnt(4)", "other", rd=[vF])] + mask_of(list(range(1, NE + 1))) + \
                          flag_eval() + [scmp("s_cmp_eq_u32", sMask[0], sSrcBit), sop("s_cselect_b32", sEarly, 1, 0)]
        elif q == 1:
            other += [(2, flagst), (6, store(4, q)), (12, store(5, q))]
        elif q == 3 and not last:
            blk = [scmp("s_cmp_eq_u32", sPos, 7), branch("s_cbranch_scc0", "L_nofs"), cond(flag_load())]
            only(blk[2:], lambda pos: False)
            opening = opening + blk + [label("L_nofs")]
        if last:
            n_here = {0: 8, 1: 8, 2: 8, 3: 6}[q] if NE == 5 else (len(early) + 3 - q) // (4 - q)
            take, early = early[:n_here], early[n_here:]
            g0, g1 = {0: (2, 24), 1: (15, 46), 2: (2, 46), 3: (2, 30)}[q]
            other += [(g0 + (i_ * (g1 - g0)) // max(len(take), 1), grp) for i_, grp in enumerate(take)]
        sp = sorted(other, key=lambda x: x[0])
        if q == 3 and not last:
            post += [sop("s_xor_b32", sTog, sTog, 65536), sop("s_sub_u32", sBaseM, sW2K, sTog),
                     sop("s_add_u32", sBaseP, sW2K, sTog)]
            post += adv_read_pair([vWoE, vWoO])
            post += [sop("s_add_u32", sNext, sNext, 1), sop("s_and_b32", sNext, sNext, 7),
                     sop("s_lshl_b32", sT0, sNext, 3), sop("s_add_u32", sT0, sT0, sJ),
                     sop("s_mul_i32", sPrev, sT0, 24576), sop("s_add_u32", sPrev2, sPrev, 4096),
                     sop("s_add_u32", sPos, sPos, 1)]
        code, tail = schedule(tail, units, LAG, fill, sp, opening, post=post)
        body += code
    assert not early
    if last:
        return body, body, tail
    body += [scmp("s_cmp_le_u32", sPos, 7), branch("s_cbranch_scc1", "L_WO" + sfx)]
    tr = []
    for pos in range(1, 8):
        tr += [i for i in body if skip.get(id(i), lambda p: True)(pos)]
    return body, tr, tail


def outproj():
    fr0 = G.fr
    dummy = wo_units(3)[-LAG:]
    G.fr = fr0
    z = []
    if PROF2 or E("PROF4"):
        for i_ in range(7):
            z.append(sop("s_mov_b32", s(8 + i_), 0))
        z += [raw("s_memtime s[48:49]", wr=[s(48, 2)]), wait_lg0(), sop("s_mov_b32", s(14), s(48))]
    put("wo_pre", wo_read_setup() + z)
    bS, trS, tail = wo_loop(dummy, False)
    add_block("WOS", bS)
    trace.extend(trS)
    G.fr = fr0
    bL, trL, tail = wo_loop(tail, True)
    add_block("WOL", bL)
    trace.extend(trL)
    fin = stamp("WOdone") + [lslot()] + [m for u in clone_tail(tail) for m in u.mfmas]
    def spin_flags(mask_code, sfx):
        o = mask_code + [sop("s_mov_b32", sCnt, 0x200000), label("L_spin" + sfx), flag_load(), wait_vm0()]
        o += flag_eval() + [scmp("s_cmp_eq_u32", sMask[0], sSrcBit), branch("s_cbranch_scc1", "L_got" + sfx),
                            raw("s_sleep 1"), sop("s_sub_u32", sCnt, sCnt, 1), scmp("s_cmp_lg_u32", sCnt, 0),
                            branch("s_cbranch_scc1", "L_spin" + sfx), label("L_got" + sfx)]
        return o
    early = list(range(1, NE + 1))
    late = list(range(NE + 1, 8))
    fin += [wait_vm0(), sop("s_add_u32", sNext, sNext, 1)] + flag_addr(False) + \
           [bstore(vStamp, vZero, sWS, sFlagDst, flags="sc1")]
    fin += stamp("drained")
    slow_e = spin_flags(mask_of(early), "A") + g_loads(early, 0) + [wait_vm0()]
    fin_tr = fin + [scmp("s_cmp_lg_u32", sEarly, 0), branch("s_cbranch_scc1", "L_haveE")]
    fin_st = fin_tr + slow_e + [label("L_haveE")]
    rest0 = g_accs(0, 6 * NE, slots=False)
    rest0 += spin_flags(mask_of(late), "B") + stamp("flagsB") + g_loads(late, 30) + g_accs(30, 6 * len(late))
    add_block("final0", fin_st + rest0)
    trace.extend(fin_tr + slow_e + rest0)
    rest = stamp("gathered")
    t0, t1, vo = vT[8], vT[9], vT[10]
    rest += [vop("v_lshrrev_b32", t0, 6, vTid), vop("v_mul_u32_u24", t0, 48, t0), vop("v_and_b32", t1, 15, vLane),
             vop("v_add_u32", t0, t0, t1), vop("v_lshlrev_b32", vo, 11, t0),
             vop("v_lshrrev_b32", t0, 4, vLane), vop("v_lshl_add_u32", vo, t0, 3, vo),
             sop("s_lshl_b32", sT0, sJ, 7), sop("s_mov_b32", sT1, 16 * 2048), sop("s_mov_b32", sT2, 32 * 2048),
             sop("s_add_u32", sT1, sT1, sT0), sop("s_add_u32", sT2, sT2, sT0)]
    for nt in range(4):
        for qt in range(3):
            src = ACC.sub((nt * 3 + qt) * 4, 4)
            d = v(16 + (nt * 3 + qt) * 2, 2)
            rest.append(vop("v_cvt_pk_bf16_f32", d[0], src[0], src[1]))
            rest.append(vop("v_cvt_pk_bf16_f32", d[1], src[2], src[3]))
            rest.append(bstore(d, vo, sOut, [sT0, sT1, sT2][qt], off=nt * 32))
    rest += [wait_vm0()] + stamp("end") + stamp_dump()
    put("final", rest)


def main():
    put("pro", prologue())
    q0_phase()
    attention()
    if STOP == "":
        outproj()
        put("fin", finish())
    sp_static, sp_trace = slow_path()
    if STOP == "":
        add_block("slow", sp_static)
    traces = [trace, sp_trace]
    if hasattr(G, "alt"):
        n0, alts = G.alt
        for trS in alts:
            traces.append(trace[:n0] + trS + trace[G.alt_end:])
    for tr in traces:
        resolve_waits(tr, T0=7)
    for tr in traces:
        resolve_hazards(tr)
    if E("NOLGKM"):
        for tr in traces:
            for i_ in tr:
                i_.req_l = None; i_.pre_l = None
    static = []
    for nm in layout:
        static.append(comment(f"---- block {nm}"))
        static += blocks[nm]
    lines = emit(static)
    hdr = open(f"cdna_kernels/{NAME}.s.ref").read().split("; Override launch geometry")[0]
    out = [hdr.rstrip("\n"),
           f"; @launch grid=(256,1,1) block=(256,1,1) lds={LDS_BYTES}",
           '.amdgcn_target "amdgcn-amd-amdhsa--gfx950"', ".text", f".globl {NAME}_kernel", ".p2align 8",
           f".type {NAME}_kernel,@function", f"{NAME}_kernel:"]
    out += lines
    out += ['.section .rodata,"a"', ".p2align 6", f".amdhsa_kernel {NAME}_kernel",
            "  .amdhsa_next_free_vgpr 512", "  .amdhsa_next_free_sgpr 102", "  .amdhsa_accum_offset 256",
            "  .amdhsa_group_segment_fixed_size 0", "  .amdhsa_kernarg_size 104", "  .amdhsa_user_sgpr_count 2",
            "  .amdhsa_user_sgpr_kernarg_segment_ptr 1", "  .amdhsa_system_sgpr_workgroup_id_x 1",
            "  .amdhsa_float_denorm_mode_32 3", "  .amdhsa_float_denorm_mode_16_64 3",
            ".end_amdhsa_kernel"]
    open(OUTF, "w").write("\n".join(out) + "\n")
    nins = sum(1 for l in lines if l.startswith("    "))
    print(f"wrote {OUTF}: {nins} instructions", file=sys.stderr)
    if PROF:
        open(OUTF + ".stamps", "w").write("\n".join(STAMPS))


main()
```
